```python
import torch

def _softmax(x, axis=-1):
    return torch.softmax(x, dim=axis)
def _gelu(x):
    return torch.nn.functional.gelu(x, approximate="tanh")
def _silu(x):
    return torch.nn.functional.silu(x)
def _sigmoid(x):
    return torch.sigmoid(x)
def _layernorm(x, axis=-1, eps=1e-5):
    m = x.mean(dim=axis, keepdim=True)
    v = x.var(dim=axis, keepdim=True, unbiased=False)
    return (x - m) / torch.sqrt(v + eps)
def _scatter_add(tgt, idx, src, axis=0):
    return tgt.clone().index_add_(axis, idx, src)
def _segment_sum(src, seg, n):
    out = torch.zeros((n,) + src.shape[1:], dtype=src.dtype)
    return out.index_add_(0, seg, src)
def _pad(x, pw):
    flat = tuple(v for pair in reversed(pw) for v in pair)
    return torch.nn.functional.pad(x, flat)

kernel_name = 'standalone__gqa_block_cached__near_ridge'

def setup_inputs():

    _w = (lambda a: (lambda t: t.to(torch.bfloat16) if t.is_floating_point() else t)(torch.as_tensor(a)))
    B, Sq, D = 16, 80, 512
    Hq, Hkv, Sk, Dh = 32, 8, 1024, 128
    assert Hq % Hkv == 0, (Hq, Hkv)
    return {
        "x": _w((lambda *s: torch.randn(*s, dtype=torch.bfloat16) * 0.8)(B, Sq, D)),
        "k_cache": _w((lambda *s: torch.randn(*s, dtype=torch.bfloat16) * 0.8)(B, Hkv, Sk, Dh)),
        "v_cache": _w((lambda *s: torch.randn(*s, dtype=torch.bfloat16) * 0.05)(B, Hkv, Sk, Dh)),
        "wq": _w((lambda *s: torch.randn(*s, dtype=torch.bfloat16) * 0.8)(D, Hq * Dh) * (D ** -0.5)),
        "wo": _w((lambda *s: torch.randn(*s, dtype=torch.bfloat16) * 0.05)(Hq * Dh, D) * ((Hq * Dh) ** -0.5)),
    }

def reference(x, k_cache, v_cache, wq, wo):
    B, Sq, D = x.shape
    Hq, Dh = 32, 128
    Hkv = k_cache.shape[1]
    rep = Hq // Hkv
    q = (lambda x, *d: x.permute(*d))((x @ wq).reshape(B, Sq, Hq, Dh), 0, 2, 1, 3)
    k = (lambda x, n, axis: torch.repeat_interleave(x, n, dim=axis))(k_cache, rep, axis=1)
    v = (lambda x, n, axis: torch.repeat_interleave(x, n, dim=axis))(v_cache, rep, axis=1)
    scores = torch.einsum("bhqd,bhkd->bhqk", q, k) * (Dh ** -0.5)
    p = _softmax(scores, axis=-1)
    o = torch.einsum("bhqk,bhkd->bhqd", p, v)
    return (lambda x, *d: x.permute(*d))(o, 0, 2, 1, 3).reshape(B, Sq, Hq * Dh) @ wo
```

```python
import re

_REG1 = re.compile(r'^-?\|?(?:abs\()?([vsa])(\d+)\)?\|?$')
_REGN = re.compile(r'^([vsa])\[(\d+):(\d+)\]$')

TRANS = ('v_exp_f32', 'v_log_f32', 'v_rcp_f32', 'v_rsq_f32', 'v_sqrt_f32', 'v_sin_f32', 'v_cos_f32')


def _regs(tok):
    tok = tok.strip()
    m = _REG1.match(tok)
    if m:
        return [(m.group(1), int(m.group(2)))]
    m = _REGN.match(tok)
    if m:
        return [(m.group(1), i) for i in range(int(m.group(2)), int(m.group(3)) + 1)]
    if tok in ('vcc', 'exec', 'm0', 'scc'):
        return [('s', tok)]
    return []


class Ins:
    def __init__(self, text, cond=False):
        self.text = text
        self.cond = cond
        self.kind = 'other'
        self.vr = set()
        self.vw = set()
        self.sr = set()
        self.sw = set()
        self.A = set(); self.B = set(); self.C = set()
        self.passes = 0
        self.states = 1
        self._parse()

    def _parse(self):
        t = self.text.split(';')[0].strip()
        if not t or t.endswith(':'):
            self.kind = 'label'
            self.states = 0
            return
        parts = t.split(None, 1)
        op = parts[0]
        self.op = op
        args = []
        if len(parts) > 1:
            args = [a.strip() for a in re.split(r',(?![^\[]*\])', parts[1])]
            last = args[-1].split()
            if last:
                args[-1] = last[0]
        R = [_regs(a) for a in args]

        def addr(lst, regs):
            for k, i in regs:
                if k == 'v':
                    lst[0].add(i)
                elif k == 's':
                    lst[1].add(i)

        rd = (self.vr, self.sr)
        wr = (self.vw, self.sw)
        if op == 's_nop':
            self.kind = 'nop'
            self.states = int(args[0], 0) + 1
        elif op.startswith('v_mfma'):
            self.kind = 'mfma'
            self.passes = 8 if '32x32' in op else 4
            addr(wr, R[0])
            for r in R[1:]:
                addr(rd, r)
            self.A = set(i for k, i in R[1] if k == 'v')
            self.B = set(i for k, i in R[2] if k == 'v')
            self.C = set(i for k, i in R[3] if k == 'v')
        elif op.startswith('v_cmp'):
            self.kind = 'valu'
            addr(wr, R[0])
            for r in R[1:]:
                addr(rd, r)
        elif op in ('v_readfirstlane_b32', 'v_readlane_b32'):
            self.kind = 'valu'
            self.rdlane = True
            addr(wr, R[0])
            for r in R[1:]:
                addr(rd, r)
        elif op.startswith('v_permlane'):
            self.kind = 'valu'
            self.perm = True
            for r in R:
                addr(rd, r); addr(wr, r)
        elif op.startswith('v_'):
            self.kind = 'trans' if op in TRANS else 'valu'
            addr(wr, R[0])
            if op.startswith('v_fmac') or op.startswith('v_cndmask'):
                if op.startswith('v_fmac'):
                    addr(rd, R[0])
            for r in R[1:]:
                addr(rd, r)
            if op.startswith('v_cndmask') and len(args) == 3:
                self.sr.add('vcc')
        elif op.startswith('ds_read'):
            self.kind = 'dsr'
            addr(wr, R[0])
            for r in R[1:]:
                addr(rd, r)
        elif op.startswith('ds_write'):
            self.kind = 'dsw'
            for r in R:
                addr(rd, r)
        elif op.startswith('buffer_load') or op.startswith('global_load'):
            if ' lds' in t:
                self.kind = 'vmemlds'
                for r in R:
                    addr(rd, r)
                self.sr.add('m0')
            else:
                self.kind = 'vmeml'
                addr(wr, R[0])
                for r in R[1:]:
                    addr(rd, r)
        elif op.startswith('buffer_store') or op.startswith('global_store'):
            self.kind = 'vmems'
            for r in R:
                addr(rd, r)
            self.wide = ('x4' in op or 'x3' in op)
            if op.startswith('buffer_store'):
                self.data = set(i for k, i in R[0] if k == 'v')
            else:
                self.data = set(i for k, i in R[1] if k == 'v')
        elif op.startswith('s_'):
            self.kind = 'salu'
            if op in ('s_waitcnt', 's_barrier', 's_setprio', 's_endpgm') or op.startswith('s_cbranch') or op == 's_branch':
                pass
            elif op.startswith('s_cmp'):
                for r in R:
                    addr(rd, r)
            else:
                if R:
                    addr(wr, R[0])
                    for r in R[1:]:
                        addr(rd, r)


TBL_AB = {2: 5, 4: 8, 8: 12, 16: 20}
TBL_C = {2: 4, 4: 6, 8: 10, 16: 18}
TBL_WAR = {2: 1, 4: 3, 8: 7, 16: 15}
VAL = ('valu', 'trans')


def need(p, c):
    n = 0
    if p.kind in VAL:
        if c.kind == 'mfma' and (p.vw & c.vr):
            n = max(n, 2)
        if p.kind == 'trans' and c.kind in ('valu', 'mfma', 'dsw', 'vmems') and (p.vw & c.vr):
            n = max(n, 1)
        if getattr(c, 'perm', False) and (p.vw & c.vr):
            n = max(n, 2)
        if getattr(c, 'rdlane', False) and (p.vw & c.vr):
            n = max(n, 1)
        if p.sw:
            if c.kind in VAL and (p.sw & c.sr):
                n = max(n, 2)
            if c.kind in ('vmeml', 'vmems', 'vmemlds') and (p.sw & c.sr):
                n = max(n, 5)
            if c.kind == 'salu' and (p.sw & c.sr):
                n = max(n, 1)
    elif p.kind == 'mfma':
        D = p.vw
        if c.kind == 'mfma':
            if D & (c.A | c.B):
                n = max(n, TBL_AB[p.passes])
            if D & c.C:
                if not (c.C == D and c.passes == p.passes):
                    n = max(n, TBL_C[p.passes])
            elif D & c.vw:
                n = max(n, TBL_AB[p.passes])
        else:
            if D & (c.vr | c.vw):
                n = max(n, TBL_AB[p.passes])
            if c.kind in VAL + ('dsr', 'vmeml') and (p.C & c.vw):
                n = max(n, TBL_WAR[p.passes])
    elif p.kind == 'salu':
        if 'm0' in p.sw and c.kind == 'vmemlds':
            n = max(n, 1)
    elif p.kind == 'vmems':
        if getattr(p, 'wide', False) and c.kind in VAL + ('dsr', 'vmeml') and (p.data & c.vw):
            n = max(n, 2)
    return n


def fix(ins_list, state=None):
    if state is None:
        state = {'hist': [], 'lds': []}
    hist = state['hist']
    lds = state['lds']
    out = []

    def emit(i):
        out.append(i)
        hist.append(i)
        if len(hist) > 64:
            del hist[0]

    for c in ins_list:
        if c.kind == 'label':
            emit(c)
            continue
        if c.op == 's_waitcnt' and 'lgkmcnt(0)' in c.text:
            lds.clear()
        else:
            touched = c.vr | c.vw
            idx = -1
            for e, regs in enumerate(lds):
                if regs & touched:
                    idx = e
            if idx >= 0:
                n = len(lds) - 1 - idx
                n = min(n, 15)
                w = Ins('s_waitcnt lgkmcnt(%d)' % n, cond=c.cond)
                emit(w)
                del lds[:len(lds) - n]
        req = 0
        dist = 0
        for p in reversed(hist):
            if dist >= 20:
                break
            r = need(p, c)
            if r > dist:
                req = max(req, r - dist)
            if not (p.cond and not c.cond):
                dist += p.states
        while req > 0:
            k = min(req, 16)
            emit(Ins('s_nop %d' % (k - 1), cond=c.cond))
            req -= k
        emit(c)
        if c.kind == 'dsr':
            lds.append(set(c.vw))
        elif c.kind == 'dsw':
            lds.append(set())
    return out


class Prog:
    def __init__(self):
        self.ins = []
        self.cond = False

    def __call__(self, text):
        for line in text.strip().split('\n'):
            line = line.strip()
            if line:
                self.ins.append(Ins(line, cond=self.cond))

    def extend(self, lst):
        self.ins.extend(lst)


class VAlloc:
    def __init__(self, start=0):
        self.n = start
        self.hi = start

    def __call__(self, n=1, align=1):
        while self.n % align:
            self.n += 1
        r = self.n
        self.n += n
        self.hi = max(self.hi, self.n)
        return r


def vr(b, n):
    return 'v[%d:%d]' % (b, b + n - 1)
```

```python
import math, sys, os
sys.path.insert(0, os.path.dirname(os.path.abspath(__file__)))
from asmlib import Prog, VAlloc, Ins, fix, vr

NAME = 'standalone__gqa_block_cached__near_ridge'
HEADER = open('cdna_kernels/%s.s.ref' % NAME).read().split('; Override')[0]

C_SCALE = (128 ** -0.5) * math.log2(math.e)
THR = 8.0 / C_SCALE


def f32hex(x):
    import struct
    return '0x%08x' % struct.unpack('<I', struct.pack('<f', x))[0]


KRING = 0
VRING = 65536
XTRA = 131072
WQBUF = [32768, VRING + 32768]
XBUF = [XTRA, XTRA + 12288]
QB = [32768, VRING + 32768]
LDS_A = 163840


def gen_attn():
    P = Prog()
    va = VAlloc(1)
    vLane = va()
    vQ = va(32, 4)
    vO = va(64, 4)
    vS = [va(32, 4), va(32, 4)]
    vKf = va(16, 4)
    vVf = va(16, 4)
    vKa = va(8)
    vVa = va(4)
    vM = va(); vL0 = va(); vL1 = va(); vAl = va(); vMc = va(); vT = va(8)
    vDk = va(); vDv = va()
    vC = vS[0]
    vWa = va(2)
    vXa = va(4)
    vDw = va(); vDx = va()
    nv = va.hi

    P('''
    s_cmp_ge_u32 s2, 256
    s_cbranch_scc1 A_end
    s_load_dwordx16 s[32:47], s[0:1], 0
    v_lshrrev_b32 v%d, 6, v0
    v_and_b32 v%d, 63, v0
    ''' % (vT, vLane))
    P('s_nop 0')
    P('v_readfirstlane_b32 s3, v%d' % vT)
    P('''
    s_lshr_b32 s28, s2, 4
    s_and_b32 s29, s2, 7
    s_lshr_b32 s30, s2, 3
    s_and_b32 s30, s30, 1
    s_lshl_b32 s31, s29, 2
    s_lshl_b32 s4, s30, 1
    s_add_u32 s31, s31, s4
    s_mov_b32 s48, %s
    s_mov_b32 s49, %s
    s_mov_b32 s55, %s
    s_mov_b32 s50, 0
    s_lshl_b32 s53, s28, 3
    s_add_u32 s53, s53, s29
    s_lshl_b32 s53, s53, 18
    s_waitcnt lgkmcnt(0)
    s_mov_b32 s8, s32
    s_and_b32 s9, s33, 0xffff
    s_mov_b32 s10, 1310720
    s_mov_b32 s11, 0x20000
    s_mov_b32 s12, s34
    s_and_b32 s13, s35, 0xffff
    s_mov_b32 s14, 33554432
    s_mov_b32 s15, 0x20000
    s_mov_b32 s16, s36
    s_and_b32 s17, s37, 0xffff
    s_mov_b32 s18, 33554432
    s_mov_b32 s19, 0x20000
    s_mov_b32 s20, s38
    s_and_b32 s21, s39, 0xffff
    s_mov_b32 s22, 4194304
    s_mov_b32 s23, 0x20000
    s_mov_b32 s24, s46
    s_and_b32 s25, s47, 0xffff
    s_mov_b32 s26, 10485760
    s_mov_b32 s27, 0x20000
    ''' % (f32hex(C_SCALE), f32hex(THR), f32hex(-C_SCALE)))
    L = vLane
    t0, t1, t2, t3, t4, t5 = vT, vT + 1, vT + 2, vT + 3, vT + 4, vT + 5
    P('''
    v_lshrrev_b32 v{t0}, 4, v{L}
    v_and_b32 v{t1}, 15, v{L}
    v_lshrrev_b32 v{t2}, 5, v{L}
    v_and_b32 v{t3}, 31, v{L}
    '''.format(**locals()))
    P('''
    s_and_b32 s4, s3, 3
    s_lshl_b32 s4, s4, 2
    v_add_u32 v{t4}, s4, v{t0}
    v_xor_b32 v{t4}, v{t4}, v{t1}
    v_lshlrev_b32 v{t4}, 4, v{t4}
    v_lshl_add_u32 v{vDk}, v{t0}, 8, v{t4}
    v_lshlrev_b32 v{t4}, 2, v{t0}
    v_xor_b32 v{t4}, v{t4}, v{t1}
    v_lshlrev_b32 v{t4}, 4, v{t4}
    v_lshl_add_u32 v{vDv}, v{t0}, 8, v{t4}
    '''.format(**locals()))

    def kv_issue(tile_sreg_expr_setup, slot):
        out = []
        for ii in range(4):
            out.append('s_lshl_b32 s4, s56, 10')
            out.append('s_add_u32 s5, s4, %d' % (KRING + slot * 16384 + ii * 4096))
            out.append('s_mov_b32 m0, s5')
            out.append('s_add_u32 s5, s4, s52')
            out.append('s_add_u32 s5, s5, %d' % (ii * 4096))
            out.append('buffer_load_dwordx4 v%d, s[12:15], s5 offen lds' % vDk)
            out.append('s_add_u32 s6, s4, %d' % (VRING + slot * 16384 + ii * 4096))
            out.append('s_mov_b32 m0, s6')
            out.append('buffer_load_dwordx4 v%d, s[16:19], s5 offen lds' % vDv)
        return out

    P('''
    s_and_b32 s56, s3, 3
    s_cmp_lt_u32 s3, 4
    s_cbranch_scc1 A_nopre
    s_mov_b32 s52, s53
    ''')
    for ln in kv_issue(None, 0):
        P(ln)
    P('s_add_u32 s52, s53, 16384')
    for ln in kv_issue(None, 1):
        P(ln)
    P('A_nopre:')

    P('''
    s_and_b32 s4, s3, 1
    s_lshl_b32 s4, s4, 1
    v_add_u32 v{t4}, s4, v{t2}
    v_lshlrev_b32 v{t4}, 2, v{t4}
    v_xor_b32 v{t4}, v{t4}, v{t3}
    v_lshlrev_b32 v{t4}, 4, v{t4}
    v_lshl_add_u32 v{vDw}, v{t2}, 13, v{t4}
    '''.format(**locals()))
    P('''
    s_and_b32 s4, s3, 1
    s_lshl_b32 s4, s4, 2
    v_add_u32 v{t4}, s4, v{t0}
    v_and_b32 v{t5}, 7, v{L}
    v_xor_b32 v{t4}, v{t4}, v{t5}
    v_lshlrev_b32 v{t4}, 4, v{t4}
    v_lshrrev_b32 v{t5}, 3, v{L}
    v_lshl_add_u32 v{vDx}, v{t5}, 10, v{t4}
    '''.format(**locals()))
    P('''
    v_lshrrev_b32 v{t4}, 2, v{t1}
    v_lshl_add_u32 v{t5}, v{t2}, 3, v{t4}
    v_lshlrev_b32 v{t5}, 9, v{t5}
    v_lshlrev_b32 v{t4}, 2, v{t4}
    v_and_b32 v{a0}, 1, v{t0}
    v_lshlrev_b32 v{a0}, 1, v{a0}
    v_bfe_u32 v{a1}, v{L}, 1, 1
    v_add_u32 v{a0}, v{a0}, v{a1}
    s_lshl_b32 s4, s3, 2
    v_add_u32 v{a0}, s4, v{a0}
    v_xor_b32 v{a0}, v{a0}, v{t4}
    v_lshl_add_u32 v{t5}, v{a0}, 4, v{t5}
    v_and_b32 v{a0}, 1, v{L}
    v_lshl_add_u32 v{t5}, v{a0}, 3, v{t5}
    v_add_u32 v{w0}, {wb0}, v{t5}
    v_add_u32 v{w1}, {wb1}, v{t5}
    '''.format(a0=vT + 6, a1=vT + 7, w0=vWa, w1=vWa + 1, wb0=WQBUF[0], wb1=WQBUF[1], **locals()))
    for kk in range(4):
        P('''
        v_bfe_u32 v{t4}, v{t3}, 1, 3
        v_add_u32 v{t5}, {cst}, v{t2}
        v_xor_b32 v{t4}, v{t4}, v{t5}
        v_lshlrev_b32 v{t4}, 4, v{t4}
        v_lshl_add_u32 v{d}, v{t3}, 7, v{t4}
        v_add_u32 v{d}, {xt}, v{d}
        '''.format(cst=2 * kk, d=vXa + kk, xt=XTRA, **locals()))

    def qp_issue(c):
        buf = c & 1
        out = []
        out.append('s_lshl_b32 s4, s3, 14')
        out.append('s_lshl_b32 s5, s31, 8')
        out.append('s_add_u32 s4, s4, s5')
        out.append('s_lshl_b32 s6, s3, 10')
        for ii in range(4):
            out.append('s_add_u32 s5, s6, %d' % (WQBUF[buf] + ii * 8192))
            out.append('s_mov_b32 m0, s5')
            out.append('s_add_u32 s5, s4, %d' % (c * 524288 + ii * 131072))
            out.append('buffer_load_dwordx4 v%d, s[20:23], s5 offen lds' % vDw)
        out.append('s_mul_i32 s4, s28, 81920')
        out.append('s_lshl_b32 s5, s3, 13')
        out.append('s_add_u32 s4, s4, s5')
        out.append('s_add_u32 s4, s4, %d' % (c * 128))
        out.append('s_add_u32 s5, s6, %d' % XBUF[buf])
        out.append('s_mov_b32 m0, s5')
        out.append('buffer_load_dwordx4 v%d, s[8:11], s4 offen lds' % vDx)
        out.append('s_cmp_ge_u32 s3, 4')
        out.append('s_cbranch_scc1 A_qx%d' % c)
        out.append('s_add_u32 s4, s4, 65536')
        out.append('s_add_u32 s5, s5, 8192')
        out.append('s_mov_b32 m0, s5')
        out.append('buffer_load_dwordx4 v%d, s[8:11], s4 offen lds' % vDx)
        out.append('A_qx%d:' % c)
        return out

    for ln in qp_issue(0):
        P(ln)
    vA = vKf
    vB = vVf
    for c in range(8):
        buf = c & 1
        if c < 7:
            for ln in qp_issue(c + 1):
                P(ln)
            P('s_waitcnt vmcnt(5)')
        else:
            P('s_waitcnt vmcnt(0)')
        P('s_barrier')
        for kk in range(4):
            a = vA + 4 * (kk & 1)
            P('ds_read_b64_tr_b16 v[%d:%d], v%d offset:%d' % (a, a + 1, vWa + buf, (16 * kk) * 512))
            P('ds_read_b64_tr_b16 v[%d:%d], v%d offset:%d' % (a + 2, a + 3, vWa + buf, (16 * kk + 4) * 512))
            for t in range(3):
                breg = vB + 4 * t
                P('ds_read_b128 %s, v%d offset:%d' % (vr(breg, 4), vXa + kk, XBUF[buf] - XTRA + 4096 * t))
            for t in range(3):
                breg = vB + 4 * t
                cc = vr(vC + 16 * t, 16)
                P('v_mfma_f32_32x32x16_bf16 %s, %s, %s, %s' % (cc, vr(a, 4), vr(breg, 4), '0' if (c == 0 and kk == 0) else cc))
        P('s_waitcnt lgkmcnt(0)')
        P('s_barrier')
    P('''
    s_and_b32 s4, s3, 3
    s_lshl_b32 s4, s4, 2
    s_lshr_b32 s5, s3, 2
    s_mul_i32 s5, s5, %d
    s_add_u32 s5, s5, %d
    ''' % (QB[1] - QB[0], QB[0]))
    for q in range(4):
        P('''
        v_add_u32 v{t4}, s4, {q}
        v_xor_b32 v{t4}, v{t4}, v{t1}
        v_lshlrev_b32 v{t4}, 4, v{t4}
        v_lshl_add_u32 v{t4}, v{t3}, 8, v{t4}
        v_lshl_add_u32 v{t4}, v{t2}, 3, v{t4}
        v_add_u32 v{d}, s5, v{t4}
        '''.format(d=vKa + q, **locals()).replace('v_add_u32 v%d, s4, %d' % (t4, q), 'v_mov_b32 v%d, %d\n v_add_u32 v%d, s4, v%d' % (t4, q, t4, t4)))
    for t in range(3):
        if t == 2:
            P('v_cmp_gt_u32 vcc, 16, v%d' % t3)
            P('s_and_saveexec_b64 s[58:59], vcc')
        for q in range(4):
            base = vC + 16 * t + 4 * q
            tp = vKf + 2 * ((4 * t + q) % 12)
            P('v_cvt_pk_bf16_f32 v%d, v%d, v%d' % (tp, base, base + 1))
            P('v_cvt_pk_bf16_f32 v%d, v%d, v%d' % (tp + 1, base + 2, base + 3))
            P('ds_write_b64 v%d, v[%d:%d] offset:%d' % (vKa + q, tp, tp + 1, 8192 * t))
        if t == 2:
            P('s_mov_b64 exec, s[58:59]')
    P('s_waitcnt lgkmcnt(0)')
    P('s_barrier')
    for kk in range(8):
        P('''
        v_add_u32 v{t4}, {cst}, v{t2}
        v_xor_b32 v{t4}, v{t4}, v{t1}
        v_lshlrev_b32 v{t4}, 4, v{t4}
        v_lshl_add_u32 v{d}, v{t3}, 8, v{t4}
        '''.format(cst=2 * kk, d=vKa + kk, **locals()))
    P('''
    s_min_u32 s4, s3, 4
    s_lshl_b32 s4, s4, 5
    v_add_u32 v{t4}, s4, v{t3}
    v_lshlrev_b32 v{t5}, 8, v{t4}
    v_add_u32 v{a0}, {qb0}, v{t5}
    v_add_u32 v{a1}, {qb1}, v{t5}
    v_cmp_gt_u32 vcc, 80, v{t4}
    v_cndmask_b32 v{t5}, v{a1}, v{a0}, vcc
    v_lshrrev_b32 v{t4}, 8, v{ka0}
    v_lshlrev_b32 v{t4}, 8, v{t4}
    v_sub_u32 v{t5}, v{t5}, v{t4}
    '''.format(a0=vT + 6, a1=vT + 7, qb0=QB[0], qb1=QB[1] - 80 * 256, ka0=vKa, **locals()))
    for kk in range(8):
        P('v_add_u32 v%d, v%d, v%d' % (vT + 6, vKa + kk, t5))
        P('ds_read_b128 %s, v%d' % (vr(vQ + 4 * kk, 4), vT + 6))
    for dt in range(4):
        P('''
        v_lshrrev_b32 v{t4}, 2, v{t1}
        v_lshl_add_u32 v{t5}, v{t2}, 2, v{t4}
        v_lshlrev_b32 v{t5}, 8, v{t5}
        v_xor_b32 v{t4}, {dt}, v{t4}
        v_lshlrev_b32 v{t4}, 2, v{t4}
        v_and_b32 v{a0}, 1, v{t0}
        v_lshl_add_u32 v{t4}, v{a0}, 1, v{t4}
        v_bfe_u32 v{a0}, v{L}, 1, 1
        v_add_u32 v{t4}, v{t4}, v{a0}
        v_lshl_add_u32 v{t5}, v{t4}, 4, v{t5}
        v_and_b32 v{a0}, 1, v{L}
        v_lshl_add_u32 v{t5}, v{a0}, 3, v{t5}
        v_add_u32 v{d}, {vb}, v{t5}
        '''.format(a0=vT + 6, d=vVa + dt, vb=VRING, **locals()))
    P('s_waitcnt lgkmcnt(0)')
    if os.environ.get('DBGQ'):
        P('s_mov_b32 s26, 0x4000000')
        P('s_lshl_b32 s4, s2, 3')
        P('s_add_u32 s4, s4, s3')
        P('s_lshl_b32 s4, s4, 13')
        P('s_add_u32 s4, s4, 0x1000000')
        P('v_lshlrev_b32 v%d, 2, v%d' % (vT + 6, L))
        for i in range(32):
            if i == 16:
                P('s_add_u32 s4, s4, 4096')
            P('buffer_store_dword v%d, v%d, s[24:27], s4 offen offset:%d' % (vQ + i, vT + 6, 256 * (i % 16)))
    P('s_barrier')
    P('v_mov_b32 v%d, 0xf149f2ca' % vM)
    P('v_mov_b32 v%d, 0' % vL0)
    P('v_mov_b32 v%d, 0' % vL1)
    for i in range(64):
        P('v_mov_b32 v%d, 0' % (vO + i))
    P('s_cmp_ge_u32 s3, 4')
    P('s_cbranch_scc1 A_small')

    pre = fix(P.ins)

    def grp(text, cond=False):
        g = []
        for line in text.strip().split('\n'):
            line = line.strip()
            if line:
                g.append(Ins(line, cond=cond))
        return g

    def softmax_groups(a, tag):
        S = vS[a]
        g1 = []
        vals = list(range(S, S + 32))
        tmp = vT
        lvl = []
        k = 0
        ti = 0
        while len(vals) - k >= 3 and ti < 8:
            g1.append(grp('v_max3_f32 v%d, v%d, v%d, v%d' % (tmp + ti, vals[k], vals[k + 1], vals[k + 2])))
            lvl.append(tmp + ti); k += 3; ti += 1
        for j in range(4):
            g1.append(grp('v_max3_f32 v%d, v%d, v%d, v%d' % (tmp + j, tmp + j, vals[24 + 2 * j], vals[25 + 2 * j])))
        g1.append(grp('v_max3_f32 v%d, v%d, v%d, v%d' % (tmp, tmp, tmp + 1, tmp + 2)))
        g1.append(grp('v_max3_f32 v%d, v%d, v%d, v%d' % (tmp + 3, tmp + 3, tmp + 4, tmp + 5)))
        g1.append(grp('v_max3_f32 v%d, v%d, v%d, v%d' % (tmp, tmp, tmp + 6, tmp + 7)))
        g1.append(grp('v_max_f32 v%d, v%d, v%d' % (tmp, tmp, tmp + 3)))
        g1.append(grp('v_mov_b32 v%d, v%d' % (tmp + 1, tmp)))
        g1.append(grp('v_permlane32_swap_b32 v%d, v%d' % (tmp, tmp + 1)))
        g1.append(grp('v_max3_f32 v%d, v%d, v%d, v%d' % (tmp, tmp, tmp + 1, vM)))
        g1.append(grp('v_sub_f32 v%d, v%d, v%d' % (tmp + 1, tmp, vM)))
        blk = grp('v_cmp_lt_f32 vcc, s49, v%d\ns_nop 1\ns_cbranch_vccz A_nr%s' % (tmp + 1, tag))
        blk += grp('''v_mul_f32 v{d}, s55, v{d}
        v_exp_f32 v{al}, v{d}
        v_mul_f32 v{l0}, v{l0}, v{al}
        v_mul_f32 v{l1}, v{l1}, v{al}
        v_mov_b32 v{m}, v{mn}
        s_mov_b32 s50, 1'''.format(d=tmp + 1, al=vAl, l0=vL0, l1=vL1, m=vM, mn=tmp), cond=True)
        blk += grp('A_nr%s:' % tag)
        g1.append(blk)
        g1.append(grp('v_mul_f32 v%d, s48, v%d' % (vMc, vM)))

        def expgroups(u):
            gs = []
            for r in range(16):
                x = S + 16 * u + r
                gs.append(grp('v_fma_f32 v%d, v%d, s48, -v%d' % (x, x, vMc)))
                gs.append(grp('v_exp_f32 v%d, v%d' % (x, x)))
                gs.append(grp('v_add_f32 v%d, v%d, v%d' % (vL0 + (r & 1), vL0 + (r & 1), x)))
                if r & 1:
                    gs.append(grp('v_cvt_pk_bf16_f32 v%d, v%d, v%d' % (S + 16 * u + (r >> 1), x - 1, x)))
            return gs
        g1 += expgroups(0)
        blk = grp('s_cmp_eq_u32 s50, 0\ns_cbranch_scc1 A_no%s' % tag)
        blk += grp('\n'.join('v_mul_f32 v%d, v%d, v%d' % (vO + i, vO + i, vAl) for i in range(64)) + '\ns_mov_b32 s50, 0', cond=True)
        blk += grp('A_no%s:' % tag)
        g2 = [blk] + expgroups(1)
        return g1, g2

    def kread(a_slotlo, u, kk, ring):
        return grp('ds_read_b128 %s, v%d offset:%d' % (vr(vKf + 4 * ring, 4), vKa + kk, a_slotlo * 16384 + u * 8192))

    def vread(slotlo, t, dt, ring):
        b = vVf + 4 * ring
        return grp('ds_read_b64_tr_b16 v[%d:%d], v%d offset:%d\nds_read_b64_tr_b16 v[%d:%d], v%d offset:%d' % (
            b, b + 1, vVa + dt, slotlo * 16384 + 16 * t * 256, b + 2, b + 3, vVa + dt, slotlo * 16384 + (16 * t + 8) * 256))

    LA = 3

    def spread(groups, n):
        tot = sum(len(g) for g in groups)
        out = [[] for _ in range(n)]
        acc = 0
        for g in groups:
            i = min(n - 1, int(acc * n / max(tot, 1)))
            out[i] += g
            acc += len(g)
        return out

    def big_body(par, nxt, tag):
        a = par
        body = []
        H1n, _ = softmax_groups(a ^ 1, tag + 'n')
        _, H2 = softmax_groups(a, tag + 'c')
        kslot = (par + 1) & 1
        vslot = par
        qk = []
        if nxt:
            for u in range(2):
                for kk in range(8):
                    qk.append((u, kk))
        pv = [(t, dt) for t in range(4) for dt in range(4)]
        fa = spread(H2, 16)
        fb = spread(H1n, 16) if nxt else [[] for _ in range(16)]
        reads = []
        if nxt:
            for i in range(LA):
                body += kread(kslot, qk[i][0], qk[i][1], i % 4)
            for m in range(16):
                u, kk = qk[m]
                if m + LA < 16:
                    body += kread(kslot, qk[m + LA][0], qk[m + LA][1], (m + LA) % 4)
                else:
                    i = m + LA - 16
                    body += vread(vslot, pv[i][0], pv[i][1], i % 4)
                d = vr(vS[a ^ 1] + 16 * u, 16)
                body += grp('v_mfma_f32_32x32x16_bf16 %s, %s, %s, %s' % (d, vr(vKf + 4 * (m % 4), 4), vr(vQ + 4 * kk, 4), '0' if kk == 0 else d))
                body += fa[m]
        else:
            for g in fa:
                body += g
            for i in range(LA):
                body += vread(vslot, pv[i][0], pv[i][1], i % 4)
        for m in range(16):
            t, dt = pv[m]
            if m + LA < 16:
                body += vread(vslot, pv[m + LA][0], pv[m + LA][1], (m + LA) % 4)
            pb = vS[a] + 16 * (t >> 1) + 4 * (t & 1)
            o = vr(vO + 16 * dt, 16)
            body += grp('v_mfma_f32_32x32x16_bf16 %s, %s, %s, %s' % (o, vr(vVf + 4 * (m % 4), 4), vr(pb, 4), o))
            body += fb[m]
        body += grp('s_waitcnt lgkmcnt(0)\ns_barrier')
        return body

    B = []
    for u in range(2):
        for kk in range(8):
            B += kread(0, u, kk, kk % 4)
            d = vr(vS[0] + 16 * u, 16)
            B += grp('v_mfma_f32_32x32x16_bf16 %s, %s, %s, %s' % (d, vr(vKf + 4 * (kk % 4), 4), vr(vQ + 4 * kk, 4), '0' if kk == 0 else d))
    H1_0, _ = softmax_groups(0, 'p')
    for g in H1_0:
        B += g
    B += grp('s_mov_b32 s51, 0')
    B = fix(B)
    ktog = grp('\n'.join('v_xor_b32 v%d, 0x8000, v%d' % (vKa + k, vKa + k) for k in range(8)))
    vtog = grp('\n'.join('v_xor_b32 v%d, 0x8000, v%d' % (vVa + k, vVa + k) for k in range(4)))
    loop = grp('A_bloop:') + big_body(0, True, 'e') + ktog + big_body(1, True, 'o') + vtog
    loop += grp('s_add_u32 s51, s51, 1\ns_cmp_lt_u32 s51, 7\ns_cbranch_scc1 A_bloop')
    st = {'hist': [], 'lds': []}
    fix(loop, st)
    loop = fix(loop, st)
    tail = big_body(0, True, 'e2') + ktog + big_body(1, False, 'o2')
    tail = fix(tail, st)
    E = Prog()
    E('''
    v_add_f32 v{l0}, v{l0}, v{l1}
    v_mov_b32 v{l1}, v{l0}
    v_permlane32_swap_b32 v{l0}, v{l1}
    v_add_f32 v{l0}, v{l0}, v{l1}
    v_rcp_f32 v{l0}, v{l0}
    v_lshrrev_b32 v{t2}, 5, v{L}
    v_and_b32 v{t3}, 31, v{L}
    s_lshl_b32 s4, s3, 5
    v_add_u32 v{t4}, s4, v{t3}
    '''.format(l0=vL0, l1=vL1, **locals()))

    def store_addr(E):
        E('''
        v_cmp_gt_u32 vcc, 80, v{t4}
        v_subrev_u32 v{t5}, 80, v{t4}
        v_cndmask_b32 v{t5}, v{t5}, v{t4}, vcc
        v_mov_b32 v{a0}, 256
        v_cndmask_b32 v{a0}, v{a0}, 0, vcc
        s_mul_i32 s4, s28, 80
        v_add_u32 v{t5}, s4, v{t5}
        v_lshlrev_b32 v{t5}, 13, v{t5}
        v_add_u32 v{t5}, v{t5}, v{a0}
        s_lshl_b32 s4, s31, 8
        v_add_u32 v{t5}, s4, v{t5}
        v_lshl_add_u32 v{t5}, v{t2}, 3, v{t5}
        '''.format(a0=vT + 6, t4=t4, t5=t5, t2=t2))
    store_addr(E)
    for dt in range(4):
        for q in range(4):
            o = vO + 16 * dt + 4 * q
            E('v_mul_f32 v%d, v%d, v%d' % (o, o, vL0))
            E('v_mul_f32 v%d, v%d, v%d' % (o + 1, o + 1, vL0))
            E('v_mul_f32 v%d, v%d, v%d' % (o + 2, o + 2, vL0))
            E('v_mul_f32 v%d, v%d, v%d' % (o + 3, o + 3, vL0))
            E('v_cvt_pk_bf16_f32 v%d, v%d, v%d' % (o, o, o + 1))
            E('v_cvt_pk_bf16_f32 v%d, v%d, v%d' % (o + 1, o + 2, o + 3))
            E('buffer_store_dwordx2 v[%d:%d], v%d, s[24:27], 0 offen offset:%d' % (o, o + 1, t5, 64 * dt + 16 * q))
    E('s_barrier')
    E('s_branch A_end')
    big = B + loop + tail + fix(E.ins, st)

    S0 = vS[0]
    W = Prog()
    W('A_small:')
    W('''
    s_and_b32 s4, s56, 1
    s_lshl_b32 s4, s4, 13
    s_lshr_b32 s57, s56, 1
    ''')
    for k in range(8):
        W('v_add_u32 v%d, s4, v%d' % (vKa + k, vKa + k))
    for k in range(4):
        W('v_add_u32 v%d, s4, v%d' % (vVa + k, vVa + k))
    W('s_add_u32 s52, s53, 32768')
    for ln in kv_issue(None, 2):
        W(ln)
    W('s_mov_b32 s51, 0')

    def small_compute(slotlo, tag):
        Q = Prog()
        for kk in range(8):
            Q('ds_read_b128 %s, v%d offset:%d' % (vr(vKf + 4 * (kk % 4), 4), vKa + kk, slotlo * 16384))
            d = vr(S0, 16)
            Q('v_mfma_f32_32x32x16_bf16 %s, %s, %s, %s' % (d, vr(vKf + 4 * (kk % 4), 4), vr(vQ + 4 * kk, 4), '0' if kk == 0 else d))
        tmp = vT
        for j in range(5):
            Q('v_max3_f32 v%d, v%d, v%d, v%d' % (tmp + j, S0 + 3 * j, S0 + 3 * j + 1, S0 + 3 * j + 2))
        Q('v_max3_f32 v%d, v%d, v%d, v%d' % (tmp, tmp, tmp + 1, S0 + 15))
        Q('v_max3_f32 v%d, v%d, v%d, v%d' % (tmp + 2, tmp + 2, tmp + 3, tmp + 4))
        Q('v_max_f32 v%d, v%d, v%d' % (tmp, tmp, tmp + 2))
        Q('v_mov_b32 v%d, v%d' % (tmp + 1, tmp))
        Q('v_permlane32_swap_b32 v%d, v%d' % (tmp, tmp + 1))
        Q('v_max3_f32 v%d, v%d, v%d, v%d' % (tmp, tmp, tmp + 1, vM))
        Q('v_sub_f32 v%d, v%d, v%d' % (tmp + 1, tmp, vM))
        Q('v_cmp_lt_f32 vcc, s49, v%d' % (tmp + 1))
        Q('s_nop 1')
        Q('s_cbranch_vccz A_snr%s' % tag)
        Q.cond = True
        Q('v_mul_f32 v{d}, s55, v{d}\nv_exp_f32 v{al}, v{d}\nv_mul_f32 v{l0}, v{l0}, v{al}\nv_mov_b32 v{m}, v{mn}'.format(
            d=tmp + 1, al=vAl, l0=vL0, m=vM, mn=tmp))
        for i in range(64):
            Q('v_mul_f32 v%d, v%d, v%d' % (vO + i, vO + i, vAl))
        Q.cond = False
        Q('A_snr%s:' % tag)
        Q('v_mul_f32 v%d, s48, v%d' % (vMc, vM))
        for r in range(16):
            x = S0 + r
            Q('v_fma_f32 v%d, v%d, s48, -v%d' % (x, x, vMc))
            Q('v_exp_f32 v%d, v%d' % (x, x))
            Q('v_add_f32 v%d, v%d, v%d' % (vL0, vL0, x))
            if r & 1:
                Q('v_cvt_pk_bf16_f32 v%d, v%d, v%d' % (S0 + (r >> 1), x - 1, x))
        n = 0
        for t in range(2):
            for dt in range(4):
                b = vVf + 4 * (n % 4)
                Q('ds_read_b64_tr_b16 v[%d:%d], v%d offset:%d' % (b, b + 1, vVa + dt, slotlo * 16384 + 16 * t * 256))
                Q('ds_read_b64_tr_b16 v[%d:%d], v%d offset:%d' % (b + 2, b + 3, vVa + dt, slotlo * 16384 + (16 * t + 8) * 256))
                o = vr(vO + 16 * dt, 16)
                Q('v_mfma_f32_32x32x16_bf16 %s, %s, %s, %s' % (o, vr(b, 4), vr(S0 + 4 * t, 4), o))
                n += 1
        return Q.ins

    def small_body(par, issue_slot, tag, wait):
        Q = Prog()
        if issue_slot is not None:
            Q('s_add_u32 s52, s52, 16384')
            for ln in kv_issue(None, issue_slot):
                Q(ln)
        Q('s_cmp_lg_u32 s57, %d' % par)
        Q('s_cbranch_scc1 A_sskip%s' % tag)
        ins = Q.ins + small_compute(par, tag)
        R = Prog()
        R('s_waitcnt lgkmcnt(0)')
        R('A_sskip%s:' % tag)
        R('s_waitcnt vmcnt(%d)' % wait)
        R('s_barrier')
        return ins + R.ins

    sm = W.ins
    for j in range(16):
        tl = j + 3
        sm += small_body(j & 1, (tl % 4) if tl < 16 else None, 's%d' % j, 8 if tl < 16 else 0)
        if (j & 1) == 1:
            sm += [Ins('v_xor_b32 v%d, 0x8000, v%d' % (vKa + k, vKa + k)) for k in range(8)]
            sm += [Ins('v_xor_b32 v%d, 0x8000, v%d' % (vVa + k, vVa + k)) for k in range(4)]
    E = Prog()
    E('''
    v_mov_b32 v{l1}, v{l0}
    v_permlane32_swap_b32 v{l0}, v{l1}
    v_add_f32 v{l0}, v{l0}, v{l1}
    s_lshl_b32 s4, s56, 14
    v_lshlrev_b32 v{t4}, 2, v{L}
    v_add_u32 v{t4}, s4, v{t4}
    '''.format(l0=vL0, l1=vL1, **locals()))
    for i in range(64):
        E('ds_write_b32 v%d, v%d offset:%d' % (t4, vO + i, 256 * i))
    E('''
    s_lshl_b32 s4, s56, 9
    v_lshlrev_b32 v{t5}, 2, v{L}
    v_add_u32 v{t5}, s4, v{t5}
    v_add_u32 v{t5}, 65536, v{t5}
    ds_write_b32 v{t5}, v{m}
    ds_write_b32 v{t5}, v{l0} offset:256
    s_waitcnt lgkmcnt(0)
    s_barrier
    '''.format(m=vM, l0=vL0, **locals()))
    mm = vS[1]
    E('v_lshlrev_b32 v%d, 2, v%d' % (t5, L))
    E('v_add_u32 v%d, 65536, v%d' % (t5, t5))
    for i in range(4):
        E('ds_read_b32 v%d, v%d offset:%d' % (mm + i, t5, 512 * i))
        E('ds_read_b32 v%d, v%d offset:%d' % (mm + 4 + i, t5, 512 * i + 256))
    E('s_lshl_b32 s4, s56, 12')
    E('v_lshlrev_b32 v%d, 2, v%d' % (t4, L))
    E('v_add_u32 v%d, s4, v%d' % (t4, t4))
    for i in range(4):
        for r in range(16):
            E('ds_read_b32 v%d, v%d offset:%d' % (S0 + 16 * (i & 1) + r, t4, 16384 * i + 256 * r) if i < 2 else
              'ds_read_b32 v%d, v%d offset:%d' % (vO + 16 * (i & 1) + r, t4, 16384 * i + 256 * r))
    E('v_max3_f32 v%d, v%d, v%d, v%d' % (vT, mm, mm + 1, mm + 2))
    E('v_max_f32 v%d, v%d, v%d' % (vT, vT, mm + 3))
    for i in range(4):
        E('v_sub_f32 v%d, v%d, v%d' % (mm + i, mm + i, vT))
        E('v_mul_f32 v%d, s48, v%d' % (mm + i, mm + i))
        E('v_exp_f32 v%d, v%d' % (mm + i, mm + i))
    E('v_mul_f32 v%d, v%d, v%d' % (vL0, mm, mm + 4))
    for i in range(1, 4):
        E('v_fmac_f32 v%d, v%d, v%d' % (vL0, mm + i, mm + 4 + i))
    E('v_rcp_f32 v%d, v%d' % (vL0, vL0))
    for i in range(4):
        E('v_mul_f32 v%d, v%d, v%d' % (mm + i, mm + i, vL0))
    srcs = [S0, S0 + 16, vO, vO + 16]
    res = vO + 32
    for r in range(16):
        E('v_mul_f32 v%d, v%d, v%d' % (res + r, srcs[0] + r, mm))
        for i in range(1, 4):
            E('v_fmac_f32 v%d, v%d, v%d' % (res + r, srcs[i] + r, mm + i))
    E('v_lshrrev_b32 v%d, 5, v%d' % (t2, L))
    E('v_and_b32 v%d, 31, v%d' % (t3, L))
    E('v_add_u32 v%d, 128, v%d' % (t4, t3))
    store_addr(E)
    E('s_lshl_b32 s4, s56, 6')
    E('v_add_u32 v%d, s4, v%d' % (t5, t5))
    for q in range(4):
        o = res + 4 * q
        E('v_cvt_pk_bf16_f32 v%d, v%d, v%d' % (o, o, o + 1))
        E('v_cvt_pk_bf16_f32 v%d, v%d, v%d' % (o + 1, o + 2, o + 3))
        E('buffer_store_dwordx2 v[%d:%d], v%d, s[24:27], 0 offen offset:%d' % (o, o + 1, t5, 16 * q))
    sm += E.ins
    small = fix(sm)
    tailp = Prog()
    tailp('A_end:')
    tailp('s_endpgm')
    return pre + big + small + tailp.ins, nv


LDS_B = 49152


def gen_oproj():
    P = Prog()
    va = VAlloc(1)
    L = va(); t0 = va(); t1 = va(); t2 = va(); t3 = va(); t4 = va(); t5 = va()
    vD = va(); vAa = va(); vBa = va()
    vAf = va(8, 4)
    vBf = va(48, 4)
    vC = va(48, 4)
    nv = va.hi
    P('''
    s_cmp_ge_u32 s2, 256
    s_cbranch_scc1 B_end
    s_load_dwordx16 s[32:47], s[0:1], 0
    v_lshrrev_b32 v{t0}, 6, v0
    v_and_b32 v{L}, 63, v0
    s_nop 0
    v_readfirstlane_b32 s3, v{t0}
    s_lshr_b32 s28, s2, 4
    s_and_b32 s29, s2, 15
    s_waitcnt lgkmcnt(0)
    s_mov_b32 s8, s40
    s_and_b32 s9, s41, 0xffff
    s_mov_b32 s10, 4194304
    s_mov_b32 s11, 0x20000
    s_mov_b32 s12, s46
    s_and_b32 s13, s47, 0xffff
    s_mov_b32 s14, 11534336
    s_mov_b32 s15, 0x20000
    s_mov_b32 s16, s42
    s_and_b32 s17, s43, 0xffff
    s_mov_b32 s18, 1310720
    s_mov_b32 s19, 0x20000
    v_lshrrev_b32 v{t0}, 4, v{L}
    v_and_b32 v{t1}, 15, v{L}
    v_lshrrev_b32 v{t2}, 5, v{L}
    v_and_b32 v{t3}, 31, v{L}
    v_lshrrev_b32 v{t4}, 2, v{L}
    v_and_b32 v{t5}, 3, v{L}
    v_lshlrev_b32 v{t5}, 4, v{t5}
    v_lshl_add_u32 v{vD}, v{t4}, 10, v{t5}
    '''.format(**locals()))
    P('''
    v_lshrrev_b32 v{t4}, 2, v{t1}
    v_lshl_add_u32 v{t4}, v{t2}, 3, v{t4}
    v_lshlrev_b32 v{t4}, 6, v{t4}
    v_and_b32 v{t5}, 1, v{t0}
    v_lshl_add_u32 v{t4}, v{t5}, 5, v{t4}
    v_and_b32 v{t5}, 3, v{L}
    v_lshl_add_u32 v{t4}, v{t5}, 3, v{t4}
    s_lshl_b32 s4, s3, 13
    v_add_u32 v{vAa}, s4, v{t4}
    s_mul_i32 s4, s28, 80
    v_add_u32 v{t4}, s4, v{t3}
    v_lshlrev_b32 v{t4}, 13, v{t4}
    v_lshl_add_u32 v{t4}, v{t2}, 4, v{t4}
    s_lshl_b32 s4, s3, 11
    v_add_u32 v{vBa}, s4, v{t4}
    s_lshl_b32 s52, s3, 20
    s_lshl_b32 s4, s29, 6
    s_add_u32 s52, s52, s4
    s_lshl_b32 s53, s3, 13
    '''.format(**locals()))

    def dma(c):
        out = []
        for i in range(4):
            out.append('s_add_u32 s4, s53, %d' % ((c & 1) * 4096 + i * 1024))
            out.append('s_mov_b32 m0, s4')
            out.append('s_add_u32 s5, s52, %d' % ((64 * c + 16 * i) * 1024))
            out.append('buffer_load_dwordx4 v%d, s[8:11], s5 offen lds' % vD)
        return out

    def bload(step):
        out = []
        for t in range(3):
            r = vBf + 16 * (step % 3) + 4 * t
            out.append('buffer_load_dwordx4 %s, v%d, s[12:15], 0 offen offset:%d' % (vr(r, 4), vBa + 0, 0))
        return out

    for ln in dma(0):
        P(ln)
    vB1 = va(); vB2 = va()
    nv = va.hi
    P('v_add_u32 v%d, 0x40000, v%d' % (vB1, vBa))
    P('v_add_u32 v%d, 0x80000, v%d' % (vB2, vBa))
    areg = [vBa, vB1, vB2]
    NS = 64

    def bl(step):
        return ['buffer_load_dwordx4 %s, v%d, s[12:15], 0 offen offset:%d' % (vr(vBf + 12 * (step % 4) + 4 * t, 4), areg[t], 32 * step) for t in range(3)]
    PF = 3
    for s in range(PF):
        for ln in bl(s):
            P(ln)
    for step in range(NS):
        c = step // 4
        kk = step % 4
        if kk == 0:
            if c + 1 < 16:
                for ln in dma(c + 1):
                    P(ln)
        if step + PF < NS:
            for ln in bl(step + PF):
                P(ln)
        later = 3 * min(PF, NS - 1 - step)
        nd = 0
        for s2 in range(step - PF + 1, step + 1):
            if s2 >= 0 and s2 % 4 == 0 and s2 // 4 + 1 < 16:
                nd += 4
        P('s_waitcnt vmcnt(%d)' % (later + nd))
        a = vAf + 4 * (kk & 1)
        P('ds_read_b64_tr_b16 v[%d:%d], v%d offset:%d' % (a, a + 1, vAa, (c & 1) * 4096 + 16 * kk * 64))
        P('ds_read_b64_tr_b16 v[%d:%d], v%d offset:%d' % (a + 2, a + 3, vAa, (c & 1) * 4096 + (16 * kk + 4) * 64))
        for t in range(3):
            cc = vr(vC + 16 * t, 16)
            P('v_mfma_f32_32x32x16_bf16 %s, %s, %s, %s' % (cc, vr(a, 4), vr(vBf + 12 * (step % 4) + 4 * t, 4), '0' if step == 0 else cc))
    P('s_waitcnt lgkmcnt(0)')
    P('s_barrier')
    P('s_mul_i32 s4, s3, 12288')
    P('v_lshlrev_b32 v%d, 2, v%d' % (t4, L))
    P('v_add_u32 v%d, s4, v%d' % (t4, t4))
    for i in range(48):
        P('ds_write_b32 v%d, v%d offset:%d' % (t4, vC + i, 256 * i))
    P('s_waitcnt lgkmcnt(0)')
    P('s_barrier')
    P('s_lshl_b32 s4, s3, 10')
    P('v_lshlrev_b32 v%d, 2, v%d' % (t4, L))
    P('v_add_u32 v%d, s4, v%d' % (t4, t4))
    for t in range(3):
        for w in range(4):
            for r in range(4):
                P('ds_read_b32 v%d, v%d offset:%d' % (vBf + 16 * t + 4 * w + r, t4, 12288 * w + 4096 * t + 256 * r))
    P('''
    s_mul_i32 s4, s28, 80
    v_add_u32 v{t5}, s4, v{t3}
    v_lshlrev_b32 v{t5}, 10, v{t5}
    s_lshl_b32 s4, s29, 6
    s_lshl_b32 s5, s3, 4
    s_add_u32 s4, s4, s5
    v_add_u32 v{t5}, s4, v{t5}
    v_lshl_add_u32 v{t5}, v{t2}, 3, v{t5}
    '''.format(**locals()))
    for t in range(3):
        if t == 2:
            P('v_cmp_gt_u32 vcc, 16, v%d' % t3)
            P('s_and_saveexec_b64 s[58:59], vcc')
        b0 = vBf + 16 * t
        for r in range(4):
            P('v_add_f32 v%d, v%d, v%d' % (b0 + r, b0 + r, b0 + 4 + r))
            P('v_add_f32 v%d, v%d, v%d' % (b0 + 8 + r, b0 + 8 + r, b0 + 12 + r))
            P('v_add_f32 v%d, v%d, v%d' % (b0 + r, b0 + r, b0 + 8 + r))
        P('v_cvt_pk_bf16_f32 v%d, v%d, v%d' % (b0, b0, b0 + 1))
        P('v_cvt_pk_bf16_f32 v%d, v%d, v%d' % (b0 + 1, b0 + 2, b0 + 3))
        P('buffer_store_dwordx2 v[%d:%d], v%d, s[16:19], 0 offen offset:%d' % (b0, b0 + 1, t5, 32768 * t if False else 0) if t == 0 else
          'v_add_u32 v%d, %d, v%d\nbuffer_store_dwordx2 v[%d:%d], v%d, s[16:19], 0 offen' % (t4, 32768 * t, t5, b0, b0 + 1, t4))
        if t == 2:
            P('s_mov_b64 exec, s[58:59]')
    P('B_end:')
    P('s_endpgm')
    return fix(P.ins), nv


def kernel_text(label, ins, nv):
    out = ['.globl %s' % label, '.p2align 8', '.type %s,@function' % label, '%s:' % label]
    for i in ins:
        out.append(('    ' if i.kind != 'label' else '') + i.text)
    return '\n'.join(out)


def kd(label, nv):
    nv8 = (nv + 3) // 4 * 4
    return '''.amdhsa_kernel %s
  .amdhsa_next_free_vgpr %d
  .amdhsa_next_free_sgpr 102
  .amdhsa_accum_offset %d
  .amdhsa_group_segment_fixed_size 0
  .amdhsa_kernarg_size 64
  .amdhsa_user_sgpr_count 2
  .amdhsa_user_sgpr_kernarg_segment_ptr 1
  .amdhsa_system_sgpr_workgroup_id_x 1
.end_amdhsa_kernel''' % (label, nv, nv8)


def main():
    a_ins, a_nv = gen_attn()
    b_ins, b_nv = gen_oproj()
    A = 'gqa_attn_kernel'
    Bk = 'gqa_oproj_kernel'
    txt = HEADER
    txt += '; @launch kernel=%s grid=(256,1,1) block=(512,1,1) lds=%d\n' % (A, LDS_A)
    txt += '; @launch kernel=%s grid=(256,1,1) block=(256,1,1) lds=%d\n' % (Bk, LDS_B)
    txt += '.amdgcn_target "amdgcn-amd-amdhsa--gfx950"\n.text\n'
    txt += kernel_text(A, a_ins, a_nv) + '\n'
    txt += kernel_text(Bk, b_ins, b_nv) + '\n'
    txt += '.section .rodata,"a"\n.p2align 6\n' + kd(A, a_nv) + '\n.p2align 6\n' + kd(Bk, b_nv) + '\n'
    out = sys.argv[1] if len(sys.argv) > 1 else 'cdna_kernels/%s.s' % NAME
    open(out, 'w').write(txt)
    print('wrote', out, 'vgprs', a_nv, b_nv, 'instrs', len(a_ins), len(b_ins))


if __name__ == '__main__':
    main()
```

```python
import math, sys, os
sys.path.insert(0, os.path.dirname(os.path.abspath(__file__)))
from asmlib import Prog, VAlloc, Ins, fix, vr

NAME = 'standalone__gqa_block_cached__near_ridge'
HEADER = open('cdna_kernels/%s.s.ref' % NAME).read().split('; Override')[0]

C_SCALE = (128 ** -0.5) * math.log2(math.e)
THR = 8.0 / C_SCALE


def f32hex(x):
    import struct
    return '0x%08x' % struct.unpack('<I', struct.pack('<f', x))[0]


KRING = 0
VRING = 65536
XTRA = 131072
WQBUF = [32768, VRING + 32768]
XBUF = [XTRA, XTRA + 12288]
QB = [32768, VRING + 32768]
LDS_A = 163840


def gen_attn():
    P = Prog()
    va = VAlloc(1)
    vLane = va()
    vQ = va(32, 4)
    vO = va(64, 4)
    vS = [va(32, 4), va(32, 4)]
    vKf = va(16, 4)
    vVf = va(16, 4)
    vKa = va(8)
    vVa = va(4)
    vM = va(); vL0 = va(); vL1 = va(); vAl = va(); vMc = va(); vT = va(8)
    vDk = va(); vDv = va()
    vC = vS[0]
    vWa = va(2)
    vXa = va(4)
    vDw = va(); vDx = va()
    nv = va.hi

    P('''
    s_cmp_ge_u32 s2, 256
    s_cbranch_scc1 A_end
    s_load_dwordx16 s[32:47], s[0:1], 0
    v_lshrrev_b32 v%d, 6, v0
    v_and_b32 v%d, 63, v0
    ''' % (vT, vLane))
    P('s_nop 0')
    P('v_readfirstlane_b32 s3, v%d' % vT)
    P('''
    s_lshr_b32 s28, s2, 4
    s_and_b32 s29, s2, 7
    s_lshr_b32 s30, s2, 3
    s_and_b32 s30, s30, 1
    s_lshl_b32 s31, s29, 2
    s_lshl_b32 s4, s30, 1
    s_add_u32 s31, s31, s4
    s_mov_b32 s48, %s
    s_mov_b32 s49, %s
    s_mov_b32 s55, %s
    s_mov_b32 s50, 0
    s_lshl_b32 s53, s28, 3
    s_add_u32 s53, s53, s29
    s_lshl_b32 s53, s53, 18
    s_waitcnt lgkmcnt(0)
    s_mov_b32 s8, s32
    s_and_b32 s9, s33, 0xffff
    s_mov_b32 s10, 1310720
    s_mov_b32 s11, 0x20000
    s_mov_b32 s12, s34
    s_and_b32 s13, s35, 0xffff
    s_mov_b32 s14, 33554432
    s_mov_b32 s15, 0x20000
    s_mov_b32 s16, s36
    s_and_b32 s17, s37, 0xffff
    s_mov_b32 s18, 33554432
    s_mov_b32 s19, 0x20000
    s_mov_b32 s20, s38
    s_and_b32 s21, s39, 0xffff
    s_mov_b32 s22, 4194304
    s_mov_b32 s23, 0x20000
    s_mov_b32 s24, s46
    s_and_b32 s25, s47, 0xffff
    s_mov_b32 s26, 12582912
    s_mov_b32 s27, 0x20000
    ''' % (f32hex(C_SCALE), f32hex(THR), f32hex(-C_SCALE)))
    L = vLane
    t0, t1, t2, t3, t4, t5 = vT, vT + 1, vT + 2, vT + 3, vT + 4, vT + 5
    P('''
    v_lshrrev_b32 v{t0}, 4, v{L}
    v_and_b32 v{t1}, 15, v{L}
    v_lshrrev_b32 v{t2}, 5, v{L}
    v_and_b32 v{t3}, 31, v{L}
    '''.format(**locals()))
    P('''
    s_and_b32 s4, s3, 3
    s_lshl_b32 s4, s4, 2
    v_add_u32 v{t4}, s4, v{t0}
    v_xor_b32 v{t4}, v{t4}, v{t1}
    v_lshlrev_b32 v{t4}, 4, v{t4}
    v_lshl_add_u32 v{vDk}, v{t0}, 8, v{t4}
    v_lshlrev_b32 v{t4}, 2, v{t0}
    v_xor_b32 v{t4}, v{t4}, v{t1}
    v_lshlrev_b32 v{t4}, 4, v{t4}
    v_lshl_add_u32 v{vDv}, v{t0}, 8, v{t4}
    '''.format(**locals()))

    def kv_issue(tile_sreg_expr_setup, slot):
        out = []
        for ii in range(4):
            out.append('s_lshl_b32 s4, s56, 10')
            out.append('s_add_u32 s5, s4, %d' % (KRING + slot * 16384 + ii * 4096))
            out.append('s_mov_b32 m0, s5')
            out.append('s_add_u32 s5, s4, s52')
            out.append('s_add_u32 s5, s5, %d' % (ii * 4096))
            out.append('buffer_load_dwordx4 v%d, s[12:15], s5 offen lds' % vDk)
            out.append('s_add_u32 s6, s4, %d' % (VRING + slot * 16384 + ii * 4096))
            out.append('s_mov_b32 m0, s6')
            out.append('buffer_load_dwordx4 v%d, s[16:19], s5 offen lds' % vDv)
        return out

    P('''
    s_and_b32 s56, s3, 3
    s_cmp_lt_u32 s3, 4
    s_cbranch_scc1 A_nopre
    s_mov_b32 s52, s53
    ''')
    for ln in kv_issue(None, 0):
        P(ln)
    P('s_add_u32 s52, s53, 16384')
    for ln in kv_issue(None, 1):
        P(ln)
    P('A_nopre:')

    P('''
    s_and_b32 s4, s3, 1
    s_lshl_b32 s4, s4, 1
    v_add_u32 v{t4}, s4, v{t2}
    v_lshlrev_b32 v{t4}, 2, v{t4}
    v_xor_b32 v{t4}, v{t4}, v{t3}
    v_lshlrev_b32 v{t4}, 4, v{t4}
    v_lshl_add_u32 v{vDw}, v{t2}, 13, v{t4}
    '''.format(**locals()))
    P('''
    s_and_b32 s4, s3, 1
    s_lshl_b32 s4, s4, 2
    v_add_u32 v{t4}, s4, v{t0}
    v_and_b32 v{t5}, 7, v{L}
    v_xor_b32 v{t4}, v{t4}, v{t5}
    v_lshlrev_b32 v{t4}, 4, v{t4}
    v_lshrrev_b32 v{t5}, 3, v{L}
    v_lshl_add_u32 v{vDx}, v{t5}, 10, v{t4}
    '''.format(**locals()))
    P('''
    v_lshrrev_b32 v{t4}, 2, v{t1}
    v_lshl_add_u32 v{t5}, v{t2}, 3, v{t4}
    v_lshlrev_b32 v{t5}, 9, v{t5}
    v_lshlrev_b32 v{t4}, 2, v{t4}
    v_and_b32 v{a0}, 1, v{t0}
    v_lshlrev_b32 v{a0}, 1, v{a0}
    v_bfe_u32 v{a1}, v{L}, 1, 1
    v_add_u32 v{a0}, v{a0}, v{a1}
    s_lshl_b32 s4, s3, 2
    v_add_u32 v{a0}, s4, v{a0}
    v_xor_b32 v{a0}, v{a0}, v{t4}
    v_lshl_add_u32 v{t5}, v{a0}, 4, v{t5}
    v_and_b32 v{a0}, 1, v{L}
    v_lshl_add_u32 v{t5}, v{a0}, 3, v{t5}
    v_add_u32 v{w0}, {wb0}, v{t5}
    v_add_u32 v{w1}, {wb1}, v{t5}
    '''.format(a0=vT + 6, a1=vT + 7, w0=vWa, w1=vWa + 1, wb0=WQBUF[0], wb1=WQBUF[1], **locals()))
    for kk in range(4):
        P('''
        v_bfe_u32 v{t4}, v{t3}, 1, 3
        v_add_u32 v{t5}, {cst}, v{t2}
        v_xor_b32 v{t4}, v{t4}, v{t5}
        v_lshlrev_b32 v{t4}, 4, v{t4}
        v_lshl_add_u32 v{d}, v{t3}, 7, v{t4}
        v_add_u32 v{d}, {xt}, v{d}
        '''.format(cst=2 * kk, d=vXa + kk, xt=XTRA, **locals()))

    def qp_issue(c):
        buf = c & 1
        out = []
        out.append('s_lshl_b32 s4, s3, 14')
        out.append('s_lshl_b32 s5, s31, 8')
        out.append('s_add_u32 s4, s4, s5')
        out.append('s_lshl_b32 s6, s3, 10')
        for ii in range(4):
            out.append('s_add_u32 s5, s6, %d' % (WQBUF[buf] + ii * 8192))
            out.append('s_mov_b32 m0, s5')
            out.append('s_add_u32 s5, s4, %d' % (c * 524288 + ii * 131072))
            out.append('buffer_load_dwordx4 v%d, s[20:23], s5 offen lds' % vDw)
        out.append('s_mul_i32 s4, s28, 81920')
        out.append('s_lshl_b32 s5, s3, 13')
        out.append('s_add_u32 s4, s4, s5')
        out.append('s_add_u32 s4, s4, %d' % (c * 128))
        out.append('s_add_u32 s5, s6, %d' % XBUF[buf])
        out.append('s_mov_b32 m0, s5')
        out.append('buffer_load_dwordx4 v%d, s[8:11], s4 offen lds' % vDx)
        out.append('s_cmp_ge_u32 s3, 4')
        out.append('s_cbranch_scc1 A_qx%d' % c)
        out.append('s_add_u32 s4, s4, 65536')
        out.append('s_add_u32 s5, s5, 8192')
        out.append('s_mov_b32 m0, s5')
        out.append('buffer_load_dwordx4 v%d, s[8:11], s4 offen lds' % vDx)
        out.append('A_qx%d:' % c)
        return out

    for ln in qp_issue(0):
        P(ln)
    vA = vKf
    vB = vVf
    for c in range(8):
        buf = c & 1
        if c < 7:
            for ln in qp_issue(c + 1):
                P(ln)
            P('s_waitcnt vmcnt(5)')
        else:
            P('s_waitcnt vmcnt(0)')
        P('s_barrier')
        for kk in range(4):
            a = vA + 4 * (kk & 1)
            P('ds_read_b64_tr_b16 v[%d:%d], v%d offset:%d' % (a, a + 1, vWa + buf, (16 * kk) * 512))
            P('ds_read_b64_tr_b16 v[%d:%d], v%d offset:%d' % (a + 2, a + 3, vWa + buf, (16 * kk + 4) * 512))
            for t in range(3):
                breg = vB + 4 * t
                P('ds_read_b128 %s, v%d offset:%d' % (vr(breg, 4), vXa + kk, XBUF[buf] - XTRA + 4096 * t))
            for t in range(3):
                breg = vB + 4 * t
                cc = vr(vC + 16 * t, 16)
                P('v_mfma_f32_32x32x16_bf16 %s, %s, %s, %s' % (cc, vr(a, 4), vr(breg, 4), '0' if (c == 0 and kk == 0) else cc))
        P('s_waitcnt lgkmcnt(0)')
        P('s_barrier')
    P('''
    s_and_b32 s4, s3, 3
    s_lshl_b32 s4, s4, 2
    s_lshr_b32 s5, s3, 2
    s_mul_i32 s5, s5, %d
    s_add_u32 s5, s5, %d
    ''' % (QB[1] - QB[0], QB[0]))
    for q in range(4):
        P('''
        v_add_u32 v{t4}, s4, {q}
        v_xor_b32 v{t4}, v{t4}, v{t1}
        v_lshlrev_b32 v{t4}, 4, v{t4}
        v_lshl_add_u32 v{t4}, v{t3}, 8, v{t4}
        v_lshl_add_u32 v{t4}, v{t2}, 3, v{t4}
        v_add_u32 v{d}, s5, v{t4}
        '''.format(d=vKa + q, **locals()).replace('v_add_u32 v%d, s4, %d' % (t4, q), 'v_mov_b32 v%d, %d\n v_add_u32 v%d, s4, v%d' % (t4, q, t4, t4)))
    for t in range(3):
        if t == 2:
            P('v_cmp_gt_u32 vcc, 16, v%d' % t3)
            P('s_and_saveexec_b64 s[58:59], vcc')
        for q in range(4):
            base = vC + 16 * t + 4 * q
            tp = vKf + 2 * ((4 * t + q) % 12)
            P('v_cvt_pk_bf16_f32 v%d, v%d, v%d' % (tp, base, base + 1))
            P('v_cvt_pk_bf16_f32 v%d, v%d, v%d' % (tp + 1, base + 2, base + 3))
            P('ds_write_b64 v%d, v[%d:%d] offset:%d' % (vKa + q, tp, tp + 1, 8192 * t))
        if t == 2:
            P('s_mov_b64 exec, s[58:59]')
    P('s_waitcnt lgkmcnt(0)')
    P('s_barrier')
    for kk in range(8):
        P('''
        v_add_u32 v{t4}, {cst}, v{t2}
        v_xor_b32 v{t4}, v{t4}, v{t1}
        v_lshlrev_b32 v{t4}, 4, v{t4}
        v_lshl_add_u32 v{d}, v{t3}, 8, v{t4}
        '''.format(cst=2 * kk, d=vKa + kk, **locals()))
    P('''
    s_min_u32 s4, s3, 4
    s_lshl_b32 s4, s4, 5
    v_add_u32 v{t4}, s4, v{t3}
    v_lshlrev_b32 v{t5}, 8, v{t4}
    v_add_u32 v{a0}, {qb0}, v{t5}
    v_add_u32 v{a1}, {qb1}, v{t5}
    v_cmp_gt_u32 vcc, 80, v{t4}
    v_cndmask_b32 v{t5}, v{a1}, v{a0}, vcc
    v_lshrrev_b32 v{t4}, 8, v{ka0}
    v_lshlrev_b32 v{t4}, 8, v{t4}
    v_sub_u32 v{t5}, v{t5}, v{t4}
    '''.format(a0=vT + 6, a1=vT + 7, qb0=QB[0], qb1=QB[1] - 80 * 256, ka0=vKa, **locals()))
    for kk in range(8):
        P('v_add_u32 v%d, v%d, v%d' % (vT + 6, vKa + kk, t5))
        P('ds_read_b128 %s, v%d' % (vr(vQ + 4 * kk, 4), vT + 6))
    for dt in range(4):
        P('''
        v_lshrrev_b32 v{t4}, 2, v{t1}
        v_lshl_add_u32 v{t5}, v{t2}, 2, v{t4}
        v_lshlrev_b32 v{t5}, 8, v{t5}
        v_xor_b32 v{t4}, {dt}, v{t4}
        v_lshlrev_b32 v{t4}, 2, v{t4}
        v_and_b32 v{a0}, 1, v{t0}
        v_lshl_add_u32 v{t4}, v{a0}, 1, v{t4}
        v_bfe_u32 v{a0}, v{L}, 1, 1
        v_add_u32 v{t4}, v{t4}, v{a0}
        v_lshl_add_u32 v{t5}, v{t4}, 4, v{t5}
        v_and_b32 v{a0}, 1, v{L}
        v_lshl_add_u32 v{t5}, v{a0}, 3, v{t5}
        v_add_u32 v{d}, {vb}, v{t5}
        '''.format(a0=vT + 6, d=vVa + dt, vb=VRING, **locals()))
    P('s_waitcnt lgkmcnt(0)')
    if os.environ.get('DBGQ'):
        P('s_mov_b32 s26, 0x4000000')
        P('s_lshl_b32 s4, s2, 3')
        P('s_add_u32 s4, s4, s3')
        P('s_lshl_b32 s4, s4, 13')
        P('s_add_u32 s4, s4, 0x1000000')
        P('v_lshlrev_b32 v%d, 2, v%d' % (vT + 6, L))
        for i in range(32):
            if i == 16:
                P('s_add_u32 s4, s4, 4096')
            P('buffer_store_dword v%d, v%d, s[24:27], s4 offen offset:%d' % (vQ + i, vT + 6, 256 * (i % 16)))
    P('s_barrier')
    P('v_mov_b32 v%d, 0xf149f2ca' % vM)
    P('v_mov_b32 v%d, 0' % vL0)
    P('v_mov_b32 v%d, 0' % vL1)
    for i in range(64):
        P('v_mov_b32 v%d, 0' % (vO + i))
    P('s_cmp_ge_u32 s3, 4')
    P('s_cbranch_scc1 A_small')

    pre = fix(P.ins)

    def grp(text, cond=False):
        g = []
        for line in text.strip().split('\n'):
            line = line.strip()
            if line:
                g.append(Ins(line, cond=cond))
        return g

    def softmax_groups(a, tag):
        S = vS[a]
        g1 = []
        vals = list(range(S, S + 32))
        tmp = vT
        lvl = []
        k = 0
        ti = 0
        while len(vals) - k >= 3 and ti < 8:
            g1.append(grp('v_max3_f32 v%d, v%d, v%d, v%d' % (tmp + ti, vals[k], vals[k + 1], vals[k + 2])))
            lvl.append(tmp + ti); k += 3; ti += 1
        for j in range(4):
            g1.append(grp('v_max3_f32 v%d, v%d, v%d, v%d' % (tmp + j, tmp + j, vals[24 + 2 * j], vals[25 + 2 * j])))
        g1.append(grp('v_max3_f32 v%d, v%d, v%d, v%d' % (tmp, tmp, tmp + 1, tmp + 2)))
        g1.append(grp('v_max3_f32 v%d, v%d, v%d, v%d' % (tmp + 3, tmp + 3, tmp + 4, tmp + 5)))
        g1.append(grp('v_max3_f32 v%d, v%d, v%d, v%d' % (tmp, tmp, tmp + 6, tmp + 7)))
        g1.append(grp('v_max_f32 v%d, v%d, v%d' % (tmp, tmp, tmp + 3)))
        g1.append(grp('v_mov_b32 v%d, v%d' % (tmp + 1, tmp)))
        g1.append(grp('v_permlane32_swap_b32 v%d, v%d' % (tmp, tmp + 1)))
        g1.append(grp('v_max3_f32 v%d, v%d, v%d, v%d' % (tmp, tmp, tmp + 1, vM)))
        g1.append(grp('v_sub_f32 v%d, v%d, v%d' % (tmp + 1, tmp, vM)))
        blk = grp('v_cmp_lt_f32 vcc, s49, v%d\ns_nop 1\ns_cbranch_vccz A_nr%s' % (tmp + 1, tag))
        blk += grp('''v_mul_f32 v{d}, s55, v{d}
        v_exp_f32 v{al}, v{d}
        v_mul_f32 v{l0}, v{l0}, v{al}
        v_mul_f32 v{l1}, v{l1}, v{al}
        v_mov_b32 v{m}, v{mn}
        s_mov_b32 s50, 1'''.format(d=tmp + 1, al=vAl, l0=vL0, l1=vL1, m=vM, mn=tmp), cond=True)
        blk += grp('A_nr%s:' % tag)
        g1.append(blk)
        g1.append(grp('v_mul_f32 v%d, s48, v%d' % (vMc, vM)))

        def expgroups(u):
            gs = []
            for r in range(16):
                x = S + 16 * u + r
                gs.append(grp('v_fma_f32 v%d, v%d, s48, -v%d' % (x, x, vMc)))
                gs.append(grp('v_exp_f32 v%d, v%d' % (x, x)))
                gs.append(grp('v_add_f32 v%d, v%d, v%d' % (vL0 + (r & 1), vL0 + (r & 1), x)))
                if r & 1:
                    gs.append(grp('v_cvt_pk_bf16_f32 v%d, v%d, v%d' % (S + 16 * u + (r >> 1), x - 1, x)))
            return gs
        g1 += expgroups(0)
        blk = grp('s_cmp_eq_u32 s50, 0\ns_cbranch_scc1 A_no%s' % tag)
        blk += grp('\n'.join('v_mul_f32 v%d, v%d, v%d' % (vO + i, vO + i, vAl) for i in range(64)) + '\ns_mov_b32 s50, 0', cond=True)
        blk += grp('A_no%s:' % tag)
        g2 = [blk] + expgroups(1)
        return g1, g2

    def kread(a_slotlo, u, kk, ring):
        return grp('ds_read_b128 %s, v%d offset:%d' % (vr(vKf + 4 * ring, 4), vKa + kk, a_slotlo * 16384 + u * 8192))

    def vread(slotlo, t, dt, ring):
        b = vVf + 4 * ring
        return grp('ds_read_b64_tr_b16 v[%d:%d], v%d offset:%d\nds_read_b64_tr_b16 v[%d:%d], v%d offset:%d' % (
            b, b + 1, vVa + dt, slotlo * 16384 + 16 * t * 256, b + 2, b + 3, vVa + dt, slotlo * 16384 + (16 * t + 8) * 256))

    LA = 3

    def spread(groups, n):
        tot = sum(len(g) for g in groups)
        out = [[] for _ in range(n)]
        acc = 0
        for g in groups:
            i = min(n - 1, int(acc * n / max(tot, 1)))
            out[i] += g
            acc += len(g)
        return out

    def big_body(par, nxt, tag):
        a = par
        body = []
        H1n, _ = softmax_groups(a ^ 1, tag + 'n')
        _, H2 = softmax_groups(a, tag + 'c')
        kslot = (par + 1) & 1
        vslot = par
        qk = []
        if nxt:
            for u in range(2):
                for kk in range(8):
                    qk.append((u, kk))
        pv = [(t, dt) for t in range(4) for dt in range(4)]
        fa = spread(H2, 16)
        fb = spread(H1n, 16) if nxt else [[] for _ in range(16)]
        reads = []
        if nxt:
            for i in range(LA):
                body += kread(kslot, qk[i][0], qk[i][1], i % 4)
            for m in range(16):
                u, kk = qk[m]
                if m + LA < 16:
                    body += kread(kslot, qk[m + LA][0], qk[m + LA][1], (m + LA) % 4)
                else:
                    i = m + LA - 16
                    body += vread(vslot, pv[i][0], pv[i][1], i % 4)
                d = vr(vS[a ^ 1] + 16 * u, 16)
                body += grp('v_mfma_f32_32x32x16_bf16 %s, %s, %s, %s' % (d, vr(vKf + 4 * (m % 4), 4), vr(vQ + 4 * kk, 4), '0' if kk == 0 else d))
                body += fa[m]
        else:
            for g in fa:
                body += g
            for i in range(LA):
                body += vread(vslot, pv[i][0], pv[i][1], i % 4)
        for m in range(16):
            t, dt = pv[m]
            if m + LA < 16:
                body += vread(vslot, pv[m + LA][0], pv[m + LA][1], (m + LA) % 4)
            pb = vS[a] + 16 * (t >> 1) + 4 * (t & 1)
            o = vr(vO + 16 * dt, 16)
            body += grp('v_mfma_f32_32x32x16_bf16 %s, %s, %s, %s' % (o, vr(vVf + 4 * (m % 4), 4), vr(pb, 4), o))
            body += fb[m]
        body += grp('s_waitcnt lgkmcnt(0)\ns_barrier')
        return body

    B = []
    for u in range(2):
        for kk in range(8):
            B += kread(0, u, kk, kk % 4)
            d = vr(vS[0] + 16 * u, 16)
            B += grp('v_mfma_f32_32x32x16_bf16 %s, %s, %s, %s' % (d, vr(vKf + 4 * (kk % 4), 4), vr(vQ + 4 * kk, 4), '0' if kk == 0 else d))
    H1_0, _ = softmax_groups(0, 'p')
    for g in H1_0:
        B += g
    B += grp('s_mov_b32 s51, 0')
    B = fix(B)
    ktog = grp('\n'.join('v_xor_b32 v%d, 0x8000, v%d' % (vKa + k, vKa + k) for k in range(8)))
    vtog = grp('\n'.join('v_xor_b32 v%d, 0x8000, v%d' % (vVa + k, vVa + k) for k in range(4)))
    loop = grp('A_bloop:') + big_body(0, True, 'e') + ktog + big_body(1, True, 'o') + vtog
    loop += grp('s_add_u32 s51, s51, 1\ns_cmp_lt_u32 s51, 7\ns_cbranch_scc1 A_bloop')
    st = {'hist': [], 'lds': []}
    fix(loop, st)
    loop = fix(loop, st)
    tail = big_body(0, True, 'e2') + ktog + big_body(1, False, 'o2')
    tail = fix(tail, st)
    E = Prog()
    E('''
    v_add_f32 v{l0}, v{l0}, v{l1}
    v_mov_b32 v{l1}, v{l0}
    v_permlane32_swap_b32 v{l0}, v{l1}
    v_add_f32 v{l0}, v{l0}, v{l1}
    v_rcp_f32 v{l0}, v{l0}
    v_lshrrev_b32 v{t2}, 5, v{L}
    v_and_b32 v{t3}, 31, v{L}
    s_lshl_b32 s4, s3, 5
    v_add_u32 v{t4}, s4, v{t3}
    '''.format(l0=vL0, l1=vL1, **locals()))

    def store_addr(E):
        E('''
        v_cmp_gt_u32 vcc, 80, v{t4}
        v_subrev_u32 v{t5}, 80, v{t4}
        v_cndmask_b32 v{t5}, v{t5}, v{t4}, vcc
        v_mov_b32 v{a0}, 8192
        v_cndmask_b32 v{a0}, v{a0}, 0, vcc
        v_lshrrev_b32 v{t4}, 5, v{t5}
        v_and_b32 v{t5}, 31, v{t5}
        v_lshlrev_b32 v{t5}, 4, v{t5}
        v_lshl_add_u32 v{t5}, v{t4}, 18, v{t5}
        v_add_u32 v{t5}, v{t5}, v{a0}
        s_mul_i32 s4, s28, 786432
        s_lshl_b32 s5, s31, 13
        s_add_u32 s4, s4, s5
        v_add_u32 v{t5}, s4, v{t5}
        v_lshl_add_u32 v{t5}, v{t2}, 3, v{t5}
        s_mov_b32 s60, 0
        s_mov_b32 s61, 2048
        s_mov_b32 s62, 4096
        s_mov_b32 s63, 6144
        '''.format(a0=vT + 6, t4=t4, t5=t5, t2=t2))
    store_addr(E)
    for dt in range(4):
        for q in range(4):
            o = vO + 16 * dt + 4 * q
            E('v_mul_f32 v%d, v%d, v%d' % (o, o, vL0))
            E('v_mul_f32 v%d, v%d, v%d' % (o + 1, o + 1, vL0))
            E('v_mul_f32 v%d, v%d, v%d' % (o + 2, o + 2, vL0))
            E('v_mul_f32 v%d, v%d, v%d' % (o + 3, o + 3, vL0))
            E('v_cvt_pk_bf16_f32 v%d, v%d, v%d' % (o, o, o + 1))
            E('v_cvt_pk_bf16_f32 v%d, v%d, v%d' % (o + 1, o + 2, o + 3))
            E('buffer_store_dwordx2 v[%d:%d], v%d, s[24:27], s%d offen offset:%d' % (o, o + 1, t5, 60 + dt, (q >> 1) * 1024 + (q & 1) * 512))
    E('s_barrier')
    E('s_branch A_end')
    big = B + loop + tail + fix(E.ins, st)

    S0 = vS[0]
    W = Prog()
    W('A_small:')
    W('''
    s_and_b32 s4, s56, 1
    s_lshl_b32 s4, s4, 13
    s_lshr_b32 s57, s56, 1
    ''')
    for k in range(8):
        W('v_add_u32 v%d, s4, v%d' % (vKa + k, vKa + k))
    for k in range(4):
        W('v_add_u32 v%d, s4, v%d' % (vVa + k, vVa + k))
    W('s_add_u32 s52, s53, 32768')
    for ln in kv_issue(None, 2):
        W(ln)
    W('s_mov_b32 s51, 0')

    def small_compute(slotlo, tag):
        Q = Prog()
        for kk in range(8):
            Q('ds_read_b128 %s, v%d offset:%d' % (vr(vKf + 4 * (kk % 4), 4), vKa + kk, slotlo * 16384))
            d = vr(S0, 16)
            Q('v_mfma_f32_32x32x16_bf16 %s, %s, %s, %s' % (d, vr(vKf + 4 * (kk % 4), 4), vr(vQ + 4 * kk, 4), '0' if kk == 0 else d))
        tmp = vT
        for j in range(5):
            Q('v_max3_f32 v%d, v%d, v%d, v%d' % (tmp + j, S0 + 3 * j, S0 + 3 * j + 1, S0 + 3 * j + 2))
        Q('v_max3_f32 v%d, v%d, v%d, v%d' % (tmp, tmp, tmp + 1, S0 + 15))
        Q('v_max3_f32 v%d, v%d, v%d, v%d' % (tmp + 2, tmp + 2, tmp + 3, tmp + 4))
        Q('v_max_f32 v%d, v%d, v%d' % (tmp, tmp, tmp + 2))
        Q('v_mov_b32 v%d, v%d' % (tmp + 1, tmp))
        Q('v_permlane32_swap_b32 v%d, v%d' % (tmp, tmp + 1))
        Q('v_max3_f32 v%d, v%d, v%d, v%d' % (tmp, tmp, tmp + 1, vM))
        Q('v_sub_f32 v%d, v%d, v%d' % (tmp + 1, tmp, vM))
        Q('v_cmp_lt_f32 vcc, s49, v%d' % (tmp + 1))
        Q('s_nop 1')
        Q('s_cbranch_vccz A_snr%s' % tag)
        Q.cond = True
        Q('v_mul_f32 v{d}, s55, v{d}\nv_exp_f32 v{al}, v{d}\nv_mul_f32 v{l0}, v{l0}, v{al}\nv_mov_b32 v{m}, v{mn}'.format(
            d=tmp + 1, al=vAl, l0=vL0, m=vM, mn=tmp))
        for i in range(64):
            Q('v_mul_f32 v%d, v%d, v%d' % (vO + i, vO + i, vAl))
        Q.cond = False
        Q('A_snr%s:' % tag)
        Q('v_mul_f32 v%d, s48, v%d' % (vMc, vM))
        for r in range(16):
            x = S0 + r
            Q('v_fma_f32 v%d, v%d, s48, -v%d' % (x, x, vMc))
            Q('v_exp_f32 v%d, v%d' % (x, x))
            Q('v_add_f32 v%d, v%d, v%d' % (vL0, vL0, x))
            if r & 1:
                Q('v_cvt_pk_bf16_f32 v%d, v%d, v%d' % (S0 + (r >> 1), x - 1, x))
        n = 0
        for t in range(2):
            for dt in range(4):
                b = vVf + 4 * (n % 4)
                Q('ds_read_b64_tr_b16 v[%d:%d], v%d offset:%d' % (b, b + 1, vVa + dt, slotlo * 16384 + 16 * t * 256))
                Q('ds_read_b64_tr_b16 v[%d:%d], v%d offset:%d' % (b + 2, b + 3, vVa + dt, slotlo * 16384 + (16 * t + 8) * 256))
                o = vr(vO + 16 * dt, 16)
                Q('v_mfma_f32_32x32x16_bf16 %s, %s, %s, %s' % (o, vr(b, 4), vr(S0 + 4 * t, 4), o))
                n += 1
        return Q.ins

    def small_body(par, issue_slot, tag, wait):
        Q = Prog()
        if issue_slot is not None:
            Q('s_add_u32 s52, s52, 16384')
            for ln in kv_issue(None, issue_slot):
                Q(ln)
        Q('s_cmp_lg_u32 s57, %d' % par)
        Q('s_cbranch_scc1 A_sskip%s' % tag)
        ins = Q.ins + small_compute(par, tag)
        R = Prog()
        R('s_waitcnt lgkmcnt(0)')
        R('A_sskip%s:' % tag)
        R('s_waitcnt vmcnt(%d)' % wait)
        R('s_barrier')
        return ins + R.ins

    sm = W.ins
    for j in range(16):
        tl = j + 3
        sm += small_body(j & 1, (tl % 4) if tl < 16 else None, 's%d' % j, 8 if tl < 16 else 0)
        if (j & 1) == 1:
            sm += [Ins('v_xor_b32 v%d, 0x8000, v%d' % (vKa + k, vKa + k)) for k in range(8)]
            sm += [Ins('v_xor_b32 v%d, 0x8000, v%d' % (vVa + k, vVa + k)) for k in range(4)]
    E = Prog()
    E('''
    v_mov_b32 v{l1}, v{l0}
    v_permlane32_swap_b32 v{l0}, v{l1}
    v_add_f32 v{l0}, v{l0}, v{l1}
    s_lshl_b32 s4, s56, 14
    v_lshlrev_b32 v{t4}, 2, v{L}
    v_add_u32 v{t4}, s4, v{t4}
    '''.format(l0=vL0, l1=vL1, **locals()))
    for i in range(64):
        E('ds_write_b32 v%d, v%d offset:%d' % (t4, vO + i, 256 * i))
    E('''
    s_lshl_b32 s4, s56, 9
    v_lshlrev_b32 v{t5}, 2, v{L}
    v_add_u32 v{t5}, s4, v{t5}
    v_add_u32 v{t5}, 65536, v{t5}
    ds_write_b32 v{t5}, v{m}
    ds_write_b32 v{t5}, v{l0} offset:256
    s_waitcnt lgkmcnt(0)
    s_barrier
    '''.format(m=vM, l0=vL0, **locals()))
    mm = vS[1]
    E('v_lshlrev_b32 v%d, 2, v%d' % (t5, L))
    E('v_add_u32 v%d, 65536, v%d' % (t5, t5))
    for i in range(4):
        E('ds_read_b32 v%d, v%d offset:%d' % (mm + i, t5, 512 * i))
        E('ds_read_b32 v%d, v%d offset:%d' % (mm + 4 + i, t5, 512 * i + 256))
    E('s_lshl_b32 s4, s56, 12')
    E('v_lshlrev_b32 v%d, 2, v%d' % (t4, L))
    E('v_add_u32 v%d, s4, v%d' % (t4, t4))
    for i in range(4):
        for r in range(16):
            E('ds_read_b32 v%d, v%d offset:%d' % (S0 + 16 * (i & 1) + r, t4, 16384 * i + 256 * r) if i < 2 else
              'ds_read_b32 v%d, v%d offset:%d' % (vO + 16 * (i & 1) + r, t4, 16384 * i + 256 * r))
    E('v_max3_f32 v%d, v%d, v%d, v%d' % (vT, mm, mm + 1, mm + 2))
    E('v_max_f32 v%d, v%d, v%d' % (vT, vT, mm + 3))
    for i in range(4):
        E('v_sub_f32 v%d, v%d, v%d' % (mm + i, mm + i, vT))
        E('v_mul_f32 v%d, s48, v%d' % (mm + i, mm + i))
        E('v_exp_f32 v%d, v%d' % (mm + i, mm + i))
    E('v_mul_f32 v%d, v%d, v%d' % (vL0, mm, mm + 4))
    for i in range(1, 4):
        E('v_fmac_f32 v%d, v%d, v%d' % (vL0, mm + i, mm + 4 + i))
    E('v_rcp_f32 v%d, v%d' % (vL0, vL0))
    for i in range(4):
        E('v_mul_f32 v%d, v%d, v%d' % (mm + i, mm + i, vL0))
    srcs = [S0, S0 + 16, vO, vO + 16]
    res = vO + 32
    for r in range(16):
        E('v_mul_f32 v%d, v%d, v%d' % (res + r, srcs[0] + r, mm))
        for i in range(1, 4):
            E('v_fmac_f32 v%d, v%d, v%d' % (res + r, srcs[i] + r, mm + i))
    E('v_lshrrev_b32 v%d, 5, v%d' % (t2, L))
    E('v_and_b32 v%d, 31, v%d' % (t3, L))
    E('v_add_u32 v%d, 128, v%d' % (t4, t3))
    store_addr(E)
    E('s_lshl_b32 s4, s56, 11')
    E('v_add_u32 v%d, s4, v%d' % (t5, t5))
    for q in range(4):
        o = res + 4 * q
        E('v_cvt_pk_bf16_f32 v%d, v%d, v%d' % (o, o, o + 1))
        E('v_cvt_pk_bf16_f32 v%d, v%d, v%d' % (o + 1, o + 2, o + 3))
        E('buffer_store_dwordx2 v[%d:%d], v%d, s[24:27], 0 offen offset:%d' % (o, o + 1, t5, (q >> 1) * 1024 + (q & 1) * 512))
    sm += E.ins
    small = fix(sm)
    tailp = Prog()
    tailp('A_end:')
    tailp('s_endpgm')
    return pre + big + small + tailp.ins, nv


LDS_B = 49152


def gen_oproj():
    P = Prog()
    va = VAlloc(1)
    L = va(); t0 = va(); t1 = va(); t2 = va(); t3 = va(); t4 = va(); t5 = va()
    vD = va(); vAa = va(); vBa = va()
    vAf = va(8, 4)
    vBf = va(48, 4)
    vC = va(48, 4)
    nv = va.hi
    P('''
    s_cmp_ge_u32 s2, 256
    s_cbranch_scc1 B_end
    s_load_dwordx16 s[32:47], s[0:1], 0
    v_lshrrev_b32 v{t0}, 6, v0
    v_and_b32 v{L}, 63, v0
    s_nop 0
    v_readfirstlane_b32 s3, v{t0}
    s_lshr_b32 s28, s2, 4
    s_and_b32 s29, s2, 15
    s_waitcnt lgkmcnt(0)
    s_mov_b32 s8, s40
    s_and_b32 s9, s41, 0xffff
    s_mov_b32 s10, 4194304
    s_mov_b32 s11, 0x20000
    s_mov_b32 s12, s46
    s_and_b32 s13, s47, 0xffff
    s_mov_b32 s14, 12582912
    s_mov_b32 s15, 0x20000
    s_mov_b32 s16, s42
    s_and_b32 s17, s43, 0xffff
    s_mov_b32 s18, 1310720
    s_mov_b32 s19, 0x20000
    v_lshrrev_b32 v{t0}, 4, v{L}
    v_and_b32 v{t1}, 15, v{L}
    v_lshrrev_b32 v{t2}, 5, v{L}
    v_and_b32 v{t3}, 31, v{L}
    v_lshrrev_b32 v{t4}, 2, v{L}
    v_and_b32 v{t5}, 3, v{L}
    v_lshlrev_b32 v{t5}, 4, v{t5}
    v_lshl_add_u32 v{vD}, v{t4}, 10, v{t5}
    '''.format(**locals()))
    P('''
    v_lshrrev_b32 v{t4}, 2, v{t1}
    v_lshl_add_u32 v{t4}, v{t2}, 3, v{t4}
    v_lshlrev_b32 v{t4}, 6, v{t4}
    v_and_b32 v{t5}, 1, v{t0}
    v_lshl_add_u32 v{t4}, v{t5}, 5, v{t4}
    v_and_b32 v{t5}, 3, v{L}
    v_lshl_add_u32 v{t4}, v{t5}, 3, v{t4}
    s_lshl_b32 s4, s3, 13
    v_add_u32 v{vAa}, s4, v{t4}
    s_mul_i32 s4, s28, 786432
    s_lshl_b32 s5, s3, 16
    s_add_u32 s4, s4, s5
    v_lshlrev_b32 v{t4}, 4, v{L}
    v_add_u32 v{vBa}, s4, v{t4}
    s_lshl_b32 s52, s3, 20
    s_lshl_b32 s4, s29, 6
    s_add_u32 s52, s52, s4
    s_lshl_b32 s53, s3, 13
    '''.format(**locals()))

    def dma(c):
        out = []
        for i in range(4):
            out.append('s_add_u32 s4, s53, %d' % ((c & 1) * 4096 + i * 1024))
            out.append('s_mov_b32 m0, s4')
            out.append('s_add_u32 s5, s52, %d' % ((64 * c + 16 * i) * 1024))
            out.append('buffer_load_dwordx4 v%d, s[8:11], s5 offen lds' % vD)
        return out

    def bload(step):
        out = []
        for t in range(3):
            r = vBf + 16 * (step % 3) + 4 * t
            out.append('buffer_load_dwordx4 %s, v%d, s[12:15], 0 offen offset:%d' % (vr(r, 4), vBa + 0, 0))
        return out

    for ln in dma(0):
        P(ln)
    vB1 = va(); vB2 = va()
    nv = va.hi
    P('v_add_u32 v%d, 0x40000, v%d' % (vB1, vBa))
    P('v_add_u32 v%d, 0x80000, v%d' % (vB2, vBa))
    areg = [vBa, vB1, vB2]
    NS = 64

    def bl(step):
        return ['s_mov_b32 s60, %d' % (1024 * step)] + ['buffer_load_dwordx4 %s, v%d, s[12:15], s60 offen' % (vr(vBf + 12 * (step % 4) + 4 * t, 4), areg[t]) for t in range(3)]
    PF = 3
    for s in range(PF):
        for ln in bl(s):
            P(ln)
    for step in range(NS):
        c = step // 4
        kk = step % 4
        if kk == 0:
            if c + 1 < 16:
                for ln in dma(c + 1):
                    P(ln)
        if step + PF < NS:
            for ln in bl(step + PF):
                P(ln)
        later = 3 * min(PF, NS - 1 - step)
        nd = 0
        for s2 in range(step - PF + 1, step + 1):
            if s2 >= 0 and s2 % 4 == 0 and s2 // 4 + 1 < 16:
                nd += 4
        P('s_waitcnt vmcnt(%d)' % (later + nd))
        a = vAf + 4 * (kk & 1)
        P('ds_read_b64_tr_b16 v[%d:%d], v%d offset:%d' % (a, a + 1, vAa, (c & 1) * 4096 + 16 * kk * 64))
        P('ds_read_b64_tr_b16 v[%d:%d], v%d offset:%d' % (a + 2, a + 3, vAa, (c & 1) * 4096 + (16 * kk + 4) * 64))
        for t in range(3):
            cc = vr(vC + 16 * t, 16)
            P('v_mfma_f32_32x32x16_bf16 %s, %s, %s, %s' % (cc, vr(a, 4), vr(vBf + 12 * (step % 4) + 4 * t, 4), '0' if step == 0 else cc))
    P('s_waitcnt lgkmcnt(0)')
    P('s_barrier')
    P('s_mul_i32 s4, s3, 12288')
    P('v_lshlrev_b32 v%d, 2, v%d' % (t4, L))
    P('v_add_u32 v%d, s4, v%d' % (t4, t4))
    for i in range(48):
        P('ds_write_b32 v%d, v%d offset:%d' % (t4, vC + i, 256 * i))
    P('s_waitcnt lgkmcnt(0)')
    P('s_barrier')
    P('s_lshl_b32 s4, s3, 10')
    P('v_lshlrev_b32 v%d, 2, v%d' % (t4, L))
    P('v_add_u32 v%d, s4, v%d' % (t4, t4))
    for t in range(3):
        for w in range(4):
            for r in range(4):
                P('ds_read_b32 v%d, v%d offset:%d' % (vBf + 16 * t + 4 * w + r, t4, 12288 * w + 4096 * t + 256 * r))
    P('''
    s_mul_i32 s4, s28, 80
    v_add_u32 v{t5}, s4, v{t3}
    v_lshlrev_b32 v{t5}, 10, v{t5}
    s_lshl_b32 s4, s29, 6
    s_lshl_b32 s5, s3, 4
    s_add_u32 s4, s4, s5
    v_add_u32 v{t5}, s4, v{t5}
    v_lshl_add_u32 v{t5}, v{t2}, 3, v{t5}
    '''.format(**locals()))
    for t in range(3):
        if t == 2:
            P('v_cmp_gt_u32 vcc, 16, v%d' % t3)
            P('s_and_saveexec_b64 s[58:59], vcc')
        b0 = vBf + 16 * t
        for r in range(4):
            P('v_add_f32 v%d, v%d, v%d' % (b0 + r, b0 + r, b0 + 4 + r))
            P('v_add_f32 v%d, v%d, v%d' % (b0 + 8 + r, b0 + 8 + r, b0 + 12 + r))
            P('v_add_f32 v%d, v%d, v%d' % (b0 + r, b0 + r, b0 + 8 + r))
        P('v_cvt_pk_bf16_f32 v%d, v%d, v%d' % (b0, b0, b0 + 1))
        P('v_cvt_pk_bf16_f32 v%d, v%d, v%d' % (b0 + 1, b0 + 2, b0 + 3))
        P('buffer_store_dwordx2 v[%d:%d], v%d, s[16:19], 0 offen offset:%d' % (b0, b0 + 1, t5, 32768 * t if False else 0) if t == 0 else
          'v_add_u32 v%d, %d, v%d\nbuffer_store_dwordx2 v[%d:%d], v%d, s[16:19], 0 offen' % (t4, 32768 * t, t5, b0, b0 + 1, t4))
        if t == 2:
            P('s_mov_b64 exec, s[58:59]')
    P('B_end:')
    P('s_endpgm')
    return fix(P.ins), nv


def kernel_text(label, ins, nv):
    out = ['.globl %s' % label, '.p2align 8', '.type %s,@function' % label, '%s:' % label]
    for i in ins:
        out.append(('    ' if i.kind != 'label' else '') + i.text)
    return '\n'.join(out)


def kd(label, nv):
    nv8 = (nv + 3) // 4 * 4
    return '''.amdhsa_kernel %s
  .amdhsa_next_free_vgpr %d
  .amdhsa_next_free_sgpr 102
  .amdhsa_accum_offset %d
  .amdhsa_group_segment_fixed_size 0
  .amdhsa_kernarg_size 64
  .amdhsa_user_sgpr_count 2
  .amdhsa_user_sgpr_kernarg_segment_ptr 1
  .amdhsa_system_sgpr_workgroup_id_x 1
.end_amdhsa_kernel''' % (label, nv, nv8)


def main():
    a_ins, a_nv = gen_attn()
    b_ins, b_nv = gen_oproj()
    A = 'gqa_attn_kernel'
    Bk = 'gqa_oproj_kernel'
    txt = HEADER
    txt += '; @launch kernel=%s grid=(256,1,1) block=(512,1,1) lds=%d\n' % (A, LDS_A)
    txt += '; @launch kernel=%s grid=(256,1,1) block=(256,1,1) lds=%d\n' % (Bk, LDS_B)
    txt += '.amdgcn_target "amdgcn-amd-amdhsa--gfx950"\n.text\n'
    txt += kernel_text(A, a_ins, a_nv) + '\n'
    txt += kernel_text(Bk, b_ins, b_nv) + '\n'
    txt += '.section .rodata,"a"\n.p2align 6\n' + kd(A, a_nv) + '\n.p2align 6\n' + kd(Bk, b_nv) + '\n'
    out = sys.argv[1] if len(sys.argv) > 1 else 'cdna_kernels/%s.s' % NAME
    open(out, 'w').write(txt)
    print('wrote', out, 'vgprs', a_nv, b_nv, 'instrs', len(a_ins), len(b_ins))


if __name__ == '__main__':
    main()
```
